```python
import torch

def _softmax(x, axis=-1):
    return torch.softmax(x, dim=axis)
def _gelu(x):
    return torch.nn.functional.gelu(x, approximate="tanh")
def _silu(x):
    return torch.nn.functional.silu(x)
def _sigmoid(x):
    return torch.sigmoid(x)
def _layernorm(x, axis=-1, eps=1e-5):
    m = x.mean(dim=axis, keepdim=True)
    v = x.var(dim=axis, keepdim=True, unbiased=False)
    return (x - m) / torch.sqrt(v + eps)
def _scatter_add(tgt, idx, src, axis=0):
    return tgt.clone().index_add_(axis, idx, src)
def _segment_sum(src, seg, n):
    out = torch.zeros((n,) + src.shape[1:], dtype=src.dtype)
    return out.index_add_(0, seg, src)
def _pad(x, pw):
    flat = tuple(v for pair in reversed(pw) for v in pair)
    return torch.nn.functional.pad(x, flat)

kernel_name = 'standalone__mha_softmax__near_ridge'

def setup_inputs():

    _w = (lambda a: (lambda t: t.to(torch.bfloat16) if t.is_floating_point() else t)(torch.as_tensor(a)))
    B, H, Sq, Sk, D = 8, 16, 384, 2048, 256
    return {
        "q": _w((lambda *s: torch.randn(*s, dtype=torch.bfloat16) * 0.8)(B, H, Sq, D)),
        "k": _w((lambda *s: torch.randn(*s, dtype=torch.bfloat16) * 0.8)(B, H, Sk, D)),
        "v": _w((lambda *s: torch.randn(*s, dtype=torch.bfloat16) * 0.05)(B, H, Sk, D)),
    }

def reference(q, k, v):
    scale = q.shape[-1] ** -0.5
    scores = torch.einsum("bhqd,bhkd->bhqk", q, k) * scale
    p = _softmax(scores, axis=-1)
    return torch.einsum("bhqk,bhkd->bhqd", p, v)
```

```python
import sys, struct, math, argparse

NAME = "standalone__mha_softmax__near_ridge"

def f2u(x): return struct.unpack("<I", struct.pack("<f", x))[0]

V_TID = 0
V_KA = 1
V_VA = 2
V_D0 = 3
V_D1 = 4
V_QO = 5
V_CHK = 6
V_X = 7
V_TS = 8
V_L = 11
V_Y = 14
V_Z = 15
V_T = 16
NT = 8
V_CI = 24
V_E = 36
V_S = 48
V_P = 96
V_Q = 144
NV = 240
A_O = 0
A_F = 192

S_K = 4; S_V = 8; S_Q = 12; S_O = 16
S_W = 20; S_KOFF = 21; S_VOFF = 22; S_MK = 23; S_MV = 24; S_CNT = 25; S_THR = 26
S_8K = 27; S_16K = 28; S_C = 29; S_T0 = 30; S_T1 = 31; S_T2 = 32; S_T3 = 33
S_DBG = 36
S_TM = 40

PIECE = 1056
SUB = 16 * PIECE
TILE = 2 * SUB
VBASE = 2 * TILE
LDS_BYTES = 4 * TILE

def vr(b, n=1): return f"v{b}" if n == 1 else f"v[{b}:{b+n-1}]"
def ar(b, n=1): return f"a{b}" if n == 1 else f"a[{b}:{b+n-1}]"
def R(p, b, n=1): return {f"{p}{i}" for i in range(b, b+n)}

class I:
    def __init__(self, text, kind, rd=(), wr=(), cost=1, **kw):
        self.text = text; self.kind = kind; self.rd = set(rd); self.wr = set(wr); self.cost = cost
        self.__dict__.update(kw)
    def __repr__(self): return self.text

def S_reg(kb, qb): return V_S + (kb*3 + qb)*4
def P_reg(buf, qb, u): return V_P + buf*24 + (qb*2 + u)*4
def Q_reg(qb, s): return V_Q + (qb*8 + s)*4
def O_reg(qb, db): return A_O + (qb*16 + db)*4
def F_reg(idx): return A_F + (idx % 16)*4

def mfma_qk(kb, qb, s, czero=False):
    d = S_reg(kb, qb); a = F_reg(8*kb + s); b = Q_reg(qb, s)
    if s == 0:
        if czero: c = "0"; crd = set()
        else: c = vr(V_CI + 4*qb, 4); crd = R('v', V_CI + 4*qb, 4)
    else:
        c = vr(d, 4); crd = R('v', d, 4)
    return I(f"v_mfma_f32_16x16x32_bf16 {vr(d,4)}, {ar(a,4)}, {vr(b,4)}, {c}", 'mfma',
             rd=R('a', a, 4) | R('v', b, 4) | crd, wr=R('v', d, 4), frag=('K', kb, s), crd=crd)

def mfma_pv(db, qb, u, pbuf):
    d = O_reg(qb, db); a = F_reg(2*db + u); b = P_reg(pbuf, qb, u)
    return I(f"v_mfma_f32_16x16x32_bf16 {ar(d,4)}, {ar(a,4)}, {vr(b,4)}, {ar(d,4)}", 'mfma',
             rd=R('a', a, 4) | R('v', b, 4) | R('a', d, 4), wr=R('a', d, 4), frag=('V', db, u), crd=R('a', d, 4))

def k_read(kb, s, slot):
    a = F_reg(8*kb + s)
    off = slot*TILE + (kb >> 1)*SUB + (kb & 1)*512 + s*64
    return I(f"ds_read_b128 {ar(a,4)}, {vr(V_KA)} offset:{off}", 'lds', rd={f"v{V_KA}"}, wr=R('a', a, 4), frag=('K', kb, s))

def v_read(db, u, e, slot):
    a = F_reg(2*db + u) + 2*e
    off = slot*TILE + u*SUB + e*512 + db*32
    return I(f"ds_read_b64_tr_b16 {ar(a,2)}, {vr(V_VA)} offset:{off}", 'lds', rd={f"v{V_VA}"}, wr=R('a', a, 2), frag=('V', db, u))

def valu(text, rd, wr): return I(text, 'valu', rd=rd, wr=wr)
def trans(text, rd, wr): return I(text, 'trans', rd=rd, wr=wr, cost=2)
def salu(text, rd=(), wr=()): return I(text, 'salu', rd=rd, wr=wr)

def dma(which, j, slot, nt=""):
    srd = S_K if which == 'K' else S_V
    so = S_KOFF if which == 'K' else S_VOFF
    mb = S_MK if which == 'K' else S_MV
    c = slot*TILE + (j >> 2)*4*PIECE + (j & 3)*32
    m = salu(f"s_add_u32 m0, s{mb}, {c}", wr={'m0', 'scc'})
    vo = V_D0 if j < 4 else V_D1
    d = I(f"buffer_load_dwordx4 {vr(vo)}, s[{srd}:{srd+3}], s{so} offen offset:{(j&3)*1024}{nt} lds", 'dma', rd={'m0', f"v{vo}"}, cost=2)
    return m, d

class Cfg:
    Y = 62; X = 168
    dmaV = [1, 6, 11, 16, 21, 26, 31, 36]
    dmaK = [66, 72, 78, 84, 90, 96, 102, 108]
    exp_first = 13
    exp_rate1 = 2.6
    exp_last = 180
    lat = 10
    nt = ""
    stamps = False

def softmax_ops(pbuf):
    exps = []; plains = []
    n = 0
    for kb in range(4):
        for qb in range(3):
            g = kb*3 + qb
            s = S_reg(kb, qb)
            ts = V_TS + qb
            t = [V_T + ((4*g + k) % NT) for k in range(4)]
            for k in range(4):
                e = trans(f"v_exp_f32 {vr(t[k])}, {vr(s+k)}", {f"v{s+k}"}, {f"v{t[k]}"})
                e.ready = 8*g + 7; e.idx = 4*g + k
                exps.append(e)
            p = P_reg(pbuf, qb, kb >> 1) + 2*(kb & 1)
            b = 4*g
            if kb == 0:
                x = valu(f"v_add_f32 {vr(ts)}, {vr(t[0])}, {vr(t[1])}", {f"v{t[0]}", f"v{t[1]}"}, {f"v{ts}"}); x.after = b+1; plains.append(x)
            else:
                x = valu(f"v_add_f32 {vr(ts)}, {vr(ts)}, {vr(t[0])}", {f"v{t[0]}", f"v{ts}"}, {f"v{ts}"}); x.after = b; plains.append(x)
                x = valu(f"v_add_f32 {vr(ts)}, {vr(ts)}, {vr(t[1])}", {f"v{t[1]}", f"v{ts}"}, {f"v{ts}"}); x.after = b+1; plains.append(x)
            x = valu(f"v_cvt_pk_bf16_f32 {vr(p)}, {vr(t[0])}, {vr(t[1])}", {f"v{t[0]}", f"v{t[1]}"}, {f"v{p}"}); x.after = b+1; plains.append(x)
            x = valu(f"v_add_f32 {vr(ts)}, {vr(ts)}, {vr(t[2])}", {f"v{t[2]}", f"v{ts}"}, {f"v{ts}"}); x.after = b+2; plains.append(x)
            x = valu(f"v_add_f32 {vr(ts)}, {vr(ts)}, {vr(t[3])}", {f"v{t[3]}", f"v{ts}"}, {f"v{ts}"}); x.after = b+3; plains.append(x)
            x = valu(f"v_cvt_pk_bf16_f32 {vr(p+1)}, {vr(t[2])}, {vr(t[3])}", {f"v{t[2]}", f"v{t[3]}"}, {f"v{p+1}"}); x.after = b+3; plains.append(x)
    return exps, plains

def build_iter(cfg, par, do_dmaV=True, do_dmaK=True, vmY=16, vmX=16, pre_next=True, verbose=False):
    kslot = 1 - par; vslot = par; prd = par; pwr = 1 - par
    mf = []
    for kb in range(4):
        for qb in range(3):
            for s in range(8): mf.append(mfma_qk(kb, qb, s))
    for db in range(16):
        for qb in range(3):
            for u in range(2): mf.append(mfma_pv(db, qb, u, prd))
    NG = len(mf)
    lds = []
    for kb in (1, 2, 3):
        for s in range(8):
            r = k_read(kb, s, kslot); r.early = 0 if kb == 1 else 24*kb - 32 + s; r.use = 24*kb + s
            r.use = min(r.use, cfg.Y + 1)
            lds.append(r)
    for f in range(32):
        db, u = f >> 1, f & 1
        e0 = 64 + f if f < 8 else (88 + f - 8 if f < 16 else 96 + 6*(db - 8) + 4 + u)
        for e in range(2):
            r = v_read(db, u, e, vslot); r.early = max(e0, cfg.Y); r.use = min(96 + 6*db + u, cfg.X + 1); lds.append(r)
    if pre_next:
        for s in range(8):
            r = k_read(0, s, par); r.early = max(cfg.X, 148 + 6*(s >> 1) + (s & 1)); r.use = NG + s; r.nxt = True; lds.append(r)
    exps, plains = softmax_ops(pwr)
    n1 = min(48, int((96 - cfg.exp_first) / cfg.exp_rate1))
    for j, e in enumerate(exps):
        if j < n1: e.target = cfg.exp_first + j*cfg.exp_rate1
        else: e.target = 96 + (j - n1) * (cfg.exp_last - 96) / max(1, 48 - n1 - 1)
        e.target = max(e.target, e.ready + 6)
    head = [valu(f"v_add_f32 {vr(V_L+q)}, {vr(V_L+q)}, {vr(V_TS+q)}", {f"v{V_L+q}", f"v{V_TS+q}"}, {f"v{V_L+q}"}) for q in range(3)]
    for h in head: h.after = -1
    tail = [valu(f"v_max3_f32 {vr(V_CHK)}, {vr(V_TS)}, {vr(V_TS+1)}, {vr(V_TS+2)}", R('v', V_TS, 3), {f"v{V_CHK}"}),
            valu(f"v_cmp_nge_f32 vcc, s{S_THR}, {vr(V_CHK)}", {f"v{V_CHK}"}, {'vcc'})]
    for t in tail: t.after = 47
    plains = head + plains + tail
    dmas = {}
    scal = {g: [] for g in range(NG)}
    if do_dmaV:
        for j, g in enumerate(cfg.dmaV):
            m, d = dma('V', j, 1 - par, cfg.nt); dmas[g] = d; scal[g-1].append(m)
        scal[cfg.dmaV[-1] + 1].append(salu(f"s_add_u32 s{S_VOFF}, s{S_VOFF}, 32768", wr={'scc'}))
    if do_dmaK:
        for j, g in enumerate(cfg.dmaK):
            assert g > cfg.Y
            m, d = dma('K', j, 1 - par, cfg.nt); dmas[g] = d; scal[g-1].append(m)
        scal[cfg.dmaK[-1] + 1].append(salu(f"s_add_u32 s{S_KOFF}, s{S_KOFF}, 32768", wr={'scc'}))
    vec = {g: [] for g in range(NG)}
    li = ei = pi = 0
    exp_gap = {}
    last_reader = {}
    def temp_free(e):
        prev = e.idx - NT
        if prev < 0: return True
        t = next(iter(e.wr))
        for k in range(pi, len(plains)):
            if t in plains[k].rd and plains[k].after < e.idx: return False
        return True
    for g in range(NG):
        if g in dmas:
            vec[g].append(dmas[g]); continue
        cap = 2
        def lds_ok(k): return k < len(lds) and lds[k].early <= g
        def lds_slack(k):
            sl = 1e9
            for n, r in enumerate(lds[k:k+24]):
                sl = min(sl, r.use - cfg.lat - (g + n*1.4))
            return sl
        want_exp = ei < len(exps) and exps[ei].target <= g and temp_free(exps[ei])
        urgent = lds_ok(li) and lds_slack(li) <= 1
        if want_exp and not urgent:
            vec[g].append(exps[ei]); exp_gap[ei] = g; ei += 1; continue
        if lds_ok(li):
            vec[g].append(lds[li]); lds[li].gap = g; li += 1; cap -= 1
            plain_ready = pi < len(plains) and (plains[pi].after < 0 or (plains[pi].after in exp_gap and exp_gap[plains[pi].after] < g))
            if lds_ok(li) and (lds_slack(li) <= 0 or (not plain_ready and lds_slack(li) <= 12)):
                vec[g].append(lds[li]); lds[li].gap = g; li += 1; cap -= 1
        while cap > 0 and pi < len(plains) and (plains[pi].after < 0 or (plains[pi].after in exp_gap and exp_gap[plains[pi].after] < g)):
            vec[g].append(plains[pi]); pi += 1; cap -= 1
    assert li == len(lds), (li, len(lds))
    assert ei == len(exps) and pi == len(plains), (ei, pi, len(plains))
    if verbose:
        code = {'lds': 'd', 'valu': 'a', 'trans': 'E', 'dma': 'M'}
        s = ""
        for g in range(NG):
            s += "".join(code[x.kind] for x in vec[g]).ljust(2, '.') + " "
            if g % 24 == 23: s += "\n"
        sys.stderr.write(s + "\n")
    scal[cfg.Y - 1].append(I(f"s_waitcnt vmcnt({vmY}) lgkmcnt(0)", 'wait', lg=0))
    scal[cfg.Y - 1].append(I("s_barrier", 'barrier'))
    scal[cfg.X - 1].append(I(f"s_waitcnt vmcnt({vmX}) lgkmcnt(0)", 'wait', lg=0))
    scal[cfg.X - 1].append(I("s_barrier", 'barrier'))
    for r in lds:
        if r.frag[0] == 'K' and not getattr(r, 'nxt', False): assert r.gap < cfg.Y - 1 - 4, (r, r.gap)
        if r.frag[0] == 'V': assert cfg.Y - 1 <= r.gap < cfg.X - 1 - 4, (r, r.gap)
        if getattr(r, 'nxt', False): assert r.gap >= cfg.X - 1
    return mf, scal, vec

def flatten(mf, scal, vec, pending):
    out = []
    pend = list(pending)
    NG = len(mf)
    for g in range(NG):
        if g == 0:
            pend = need_wait(out, pend, mf[0])
        out.append(mf[g])
        for x in scal[g]:
            out.append(x)
            if x.kind == 'wait' and getattr(x, 'lg', None) == 0: pend = []
        if g + 1 < NG:
            pend = need_wait(out, pend, mf[g+1])
            for x in vec[g]:
                if x.kind == 'lds': assert not (x.wr & mf[g+1].rd), ("read too late", x, mf[g+1])
        for x in vec[g]:
            out.append(x)
            if x.kind == 'lds': pend.append(x)
    return out, pend

def need_wait(out, pend, m):
    last = -1
    for k, r in enumerate(pend):
        if r.wr & m.rd: last = k
    if last >= 0:
        n = len(pend) - 1 - last
        n = min(n, 15)
        out.append(I(f"s_waitcnt lgkmcnt({n})", 'wait'))
        pend = pend[len(pend) - n:] if n > 0 else []
    return pend

def states(x):
    if x.text.startswith("s_nop"): return int(x.text.split()[1]) + 1
    return 1

def check_hazards(seq, label):
    n = len(seq)
    for i, p in enumerate(seq):
        dist = 0
        for j in range(i+1, min(n, i+24)):
            c = seq[j]
            need = 0
            if p.kind == 'mfma':
                if c.kind in ('valu', 'trans', 'vmem', 'lds', 'dma') and (p.wr & (c.rd | c.wr)): need = 8
                if c.kind == 'mfma':
                    ab = c.rd - c.crd
                    if p.wr & ab: need = 8
                    if (p.wr & c.crd) and p.wr != c.crd: need = 6
                if c.kind in ('valu', 'trans') and (p.crd & c.wr): need = max(need, 3)
            if p.kind in ('valu', 'trans'):
                if c.kind == 'mfma' and (p.wr & c.rd): need = 2
                if p.kind == 'trans' and c.kind == 'valu' and (p.wr & c.rd): need = 1
                if c.text.startswith("v_permlane") and (p.wr & c.rd): need = 2
                if c.text.startswith("v_readfirstlane") and (p.wr & c.rd): need = 1
                sw = {w for w in p.wr if w.startswith('s') or w == 'vcc'}
                if sw and c.kind in ('valu', 'trans') and (sw & c.rd): need = max(need, 2)
                if sw and c.kind in ('vmem', 'dma') and (sw & c.rd): need = max(need, 5)
            if p.kind == 'salu' and 'm0' in p.wr and c.kind == 'dma': need = 1
            if p.kind == 'vmem' and getattr(p, 'store', False) and c.kind in ('valu', 'trans') and (p.data & c.wr): need = 2
            if dist < need:
                raise Exception(f"hazard in {label}: '{p.text}' -> '{c.text}' dist {dist} need {need}")
            dist += states(c)

def nop(n): return I(f"s_nop {n}", 'nop')

def xlane_reduce(op, x, ta, tb):
    o = []
    for sw in ("v_permlane16_swap_b32", "v_permlane32_swap_b32"):
        o.append(valu(f"v_mov_b32 {vr(ta)}, {vr(x)}", {f"v{x}"}, {f"v{ta}"}))
        o.append(valu(f"v_mov_b32 {vr(tb)}, {vr(x)}", {f"v{x}"}, {f"v{tb}"}))
        o.append(nop(1))
        o.append(valu(f"{sw} {vr(ta)}, {vr(tb)}", {f"v{ta}", f"v{tb}"}, {f"v{ta}", f"v{tb}"}))
        o.append(nop(1))
        o.append(valu(f"{op} {vr(x)}, {vr(ta)}, {vr(tb)}", {f"v{ta}", f"v{tb}"}, {f"v{x}"}))
    return o

def fix_max(pwr, first):
    o = [nop(15), nop(7)]
    for qb in range(3):
        dl = V_E + 0; ta = V_E + 1; tb = V_E + 2; f = V_E + 3
        regs = [S_reg(kb, qb) + r for kb in range(4) for r in range(4)]
        o.append(valu(f"v_max3_f32 {vr(dl)}, {vr(regs[0])}, {vr(regs[1])}, {vr(regs[2])}", {f"v{r}" for r in regs[:3]}, {f"v{dl}"}))
        for k in range(3, 15, 2):
            o.append(valu(f"v_max3_f32 {vr(dl)}, {vr(dl)}, {vr(regs[k])}, {vr(regs[k+1])}", {f"v{dl}", f"v{regs[k]}", f"v{regs[k+1]}"}, {f"v{dl}"}))
        o.append(valu(f"v_max_f32 {vr(dl)}, {vr(dl)}, {vr(regs[15])}", {f"v{dl}", f"v{regs[15]}"}, {f"v{dl}"}))
        o += xlane_reduce("v_max_f32", dl, ta, tb)
        if not first:
            o.append(valu(f"v_max_f32 {vr(dl)}, 0, {vr(dl)}", {f"v{dl}"}, {f"v{dl}"}))
        else:
            o.append(valu(f"v_max_f32 {vr(dl)}, 0xff7fffff, {vr(dl)}", {f"v{dl}"}, {f"v{dl}"}))
        for r in range(4):
            c = V_CI + 4*qb + r
            if first: o.append(valu(f"v_sub_f32 {vr(c)}, 0, {vr(dl)}", {f"v{dl}"}, {f"v{c}"}))
            else: o.append(valu(f"v_sub_f32 {vr(c)}, {vr(c)}, {vr(dl)}", {f"v{dl}", f"v{c}"}, {f"v{c}"}))
        if not first:
            o.append(trans(f"v_exp_f32 {vr(f)}, -{vr(dl)}", {f"v{dl}"}, {f"v{f}"}))
            o.append(nop(0))
            o.append(valu(f"v_mul_f32 {vr(V_L+qb)}, {vr(V_L+qb)}, {vr(f)}", {f"v{f}", f"v{V_L+qb}"}, {f"v{V_L+qb}"}))
            for k in range(0, 64, 4):
                a = O_reg(qb, 0) + k
                for r in range(4): o.append(valu(f"v_accvgpr_read_b32 {vr(V_T+r)}, {ar(a+r)}", {f"a{a+r}"}, {f"v{V_T+r}"}))
                for r in range(4): o.append(valu(f"v_mul_f32 {vr(V_T+r)}, {vr(V_T+r)}, {vr(f)}", {f"v{V_T+r}", f"v{f}"}, {f"v{V_T+r}"}))
                for r in range(4): o.append(valu(f"v_accvgpr_write_b32 {ar(a+r)}, {vr(V_T+r)}", {f"v{V_T+r}"}, {f"a{a+r}"}))
        ts = V_TS + qb
        for kb in range(4):
            s = S_reg(kb, qb); t = V_T + 4*(kb & 1)
            for r in range(4): o.append(valu(f"v_sub_f32 {vr(t+r)}, {vr(s+r)}, {vr(dl)}", {f"v{s+r}", f"v{dl}"}, {f"v{t+r}"}))
            for r in range(4): o.append(trans(f"v_exp_f32 {vr(t+r)}, {vr(t+r)}", {f"v{t+r}"}, {f"v{t+r}"}))
            if kb == 0:
                o.append(valu(f"v_add_f32 {vr(ts)}, {vr(t)}, {vr(t+1)}", {f"v{t}", f"v{t+1}"}, {f"v{ts}"}))
            else:
                o.append(valu(f"v_add_f32 {vr(ts)}, {vr(ts)}, {vr(t)}", {f"v{t}", f"v{ts}"}, {f"v{ts}"}))
                o.append(valu(f"v_add_f32 {vr(ts)}, {vr(ts)}, {vr(t+1)}", {f"v{t+1}", f"v{ts}"}, {f"v{ts}"}))
            o.append(valu(f"v_add_f32 {vr(ts)}, {vr(ts)}, {vr(t+2)}", {f"v{t+2}", f"v{ts}"}, {f"v{ts}"}))
            o.append(valu(f"v_add_f32 {vr(ts)}, {vr(ts)}, {vr(t+3)}", {f"v{t+3}", f"v{ts}"}, {f"v{ts}"}))
            p = P_reg(pwr, qb, kb >> 1) + 2*(kb & 1)
            o.append(valu(f"v_cvt_pk_bf16_f32 {vr(p)}, {vr(t)}, {vr(t+1)}", {f"v{t}", f"v{t+1}"}, {f"v{p}"}))
            o.append(valu(f"v_cvt_pk_bf16_f32 {vr(p+1)}, {vr(t+2)}, {vr(t+3)}", {f"v{t+2}", f"v{t+3}"}, {f"v{p+1}"}))
    o.append(nop(3))
    return o

def stamp(cfg, k):
    if not cfg.stamps: return []
    return [I(f"s_memtime s[{S_TM+2*k}:{S_TM+2*k+1}]", 'smem')]

def prologue(cfg):
    o = []
    A = o.append
    A(salu("s_cmp_ge_u32 s2, 256"))
    A(I("s_cbranch_scc1 L_end", 'branch'))
    if cfg.stamps:
        A(I(f"s_memrealtime s[{S_TM+24}:{S_TM+25}]", 'smem'))
    o += stamp(cfg, 0)
    A(I("s_load_dwordx4 s[4:7], s[0:1], 0", 'smem'))
    A(I("s_load_dwordx4 s[8:11], s[0:1], 16", 'smem'))
    if cfg.stamps:
        A(I(f"s_load_dwordx2 s[{S_DBG}:{S_DBG+1}], s[0:1], 32", 'smem'))
    A(valu(f"v_lshrrev_b32 {vr(V_X)}, 6, v0", {'v0'}, {f"v{V_X}"}))
    A(valu(f"v_and_b32 {vr(V_Y)}, 63, v0", {'v0'}, {f"v{V_Y}"}))
    A(valu(f"v_readfirstlane_b32 s{S_W}, {vr(V_X)}", {f"v{V_X}"}, {f"s{S_W}"}))
    A(salu(f"s_and_b32 s{S_T0}, s2, 7"))
    A(salu(f"s_lshl_b32 s{S_T0}, s{S_T0}, 4"))
    A(salu(f"s_lshr_b32 s{S_T1}, s2, 4"))
    A(salu(f"s_add_u32 s{S_T0}, s{S_T0}, s{S_T1}"))
    A(salu(f"s_lshr_b32 s{S_T1}, s2, 3"))
    A(salu(f"s_and_b32 s{S_T1}, s{S_T1}, 1"))
    A(salu(f"s_mul_i32 s{S_T2}, s{S_T0}, 196608"))
    A(salu(f"s_mul_i32 s{S_T1}, s{S_T1}, 98304"))
    A(salu(f"s_add_u32 s{S_T2}, s{S_T2}, s{S_T1}"))
    A(salu(f"s_mul_i32 s{S_T1}, s{S_W}, 24576"))
    A(salu(f"s_add_u32 s{S_T2}, s{S_T2}, s{S_T1}"))
    A(salu(f"s_lshl_b32 s{S_T0}, s{S_T0}, 20"))
    A(valu(f"v_lshlrev_b32 {vr(V_D0)}, 4, {vr(V_Y)}", {f"v{V_Y}"}, {f"v{V_D0}"}))
    A(valu(f"v_lshl_add_u32 {vr(V_D0)}, {vr(V_X)}, 13, {vr(V_D0)}", {f"v{V_X}", f"v{V_D0}"}, {f"v{V_D0}"}))
    A(valu(f"v_add_u32 {vr(V_D1)}, 4096, {vr(V_D0)}", {f"v{V_D0}"}, {f"v{V_D1}"}))
    A(valu(f"v_and_b32 {vr(V_X)}, 15, {vr(V_Y)}", {f"v{V_Y}"}, {f"v{V_X}"}))
    A(valu(f"v_lshrrev_b32 {vr(V_Z)}, 4, {vr(V_Y)}", {f"v{V_Y}"}, {f"v{V_Z}"}))
    A(valu(f"v_lshlrev_b32 {vr(V_Z)}, 4, {vr(V_Z)}", {f"v{V_Z}"}, {f"v{V_Z}"}))
    A(valu(f"v_lshl_add_u32 {vr(V_QO)}, {vr(V_X)}, 9, {vr(V_Z)}", {f"v{V_X}", f"v{V_Z}"}, {f"v{V_QO}"}))
    A(valu(f"v_mul_u32_u24 {vr(V_KA)}, {PIECE}, {vr(V_X)}", {f"v{V_X}"}, {f"v{V_KA}"}))
    A(valu(f"v_add_u32 {vr(V_KA)}, {vr(V_KA)}, {vr(V_Z)}", {f"v{V_KA}", f"v{V_Z}"}, {f"v{V_KA}"}))
    A(valu(f"v_lshrrev_b32 {vr(V_X)}, 2, {vr(V_Y)}", {f"v{V_Y}"}, {f"v{V_X}"}))
    A(valu(f"v_mul_u32_u24 {vr(V_VA)}, {PIECE}, {vr(V_X)}", {f"v{V_X}"}, {f"v{V_VA}"}))
    A(valu(f"v_and_b32 {vr(V_X)}, 3, {vr(V_Y)}", {f"v{V_Y}"}, {f"v{V_X}"}))
    A(valu(f"v_lshl_add_u32 {vr(V_VA)}, {vr(V_X)}, 3, {vr(V_VA)}", {f"v{V_X}", f"v{V_VA}"}, {f"v{V_VA}"}))
    A(valu(f"v_add_u32 {vr(V_VA)}, {VBASE}, {vr(V_VA)}", {f"v{V_VA}"}, {f"v{V_VA}"}))
    A(salu(f"s_mul_i32 s{S_MK}, s{S_W}, {8*PIECE}"))
    A(salu(f"s_add_u32 s{S_MV}, s{S_MK}, {VBASE}"))
    A(salu(f"s_mov_b32 s{S_KOFF}, 0"))
    A(salu(f"s_mov_b32 s{S_VOFF}, 0"))
    A(salu(f"s_mov_b32 s{S_8K}, 8192"))
    A(salu(f"s_mov_b32 s{S_16K}, 16384"))
    A(salu(f"s_mov_b32 s{S_C}, 0x{f2u(math.log2(math.e)/16):08x}"))
    A(salu(f"s_mov_b32 s{S_THR}, 0x{f2u(cfg.thr):08x}"))
    A(I("s_waitcnt lgkmcnt(0)", 'wait'))
    A(salu(f"s_add_u32 s{S_Q}, s4, s{S_T2}")); A(salu(f"s_addc_u32 s{S_Q+1}, s5, 0"))
    A(salu(f"s_add_u32 s{S_O}, s10, s{S_T2}")); A(salu(f"s_addc_u32 s{S_O+1}, s11, 0"))
    A(salu(f"s_add_u32 s{S_K}, s6, s{S_T0}")); A(salu(f"s_addc_u32 s{S_K+1}, s7, 0"))
    A(salu(f"s_add_u32 s{S_V}, s8, s{S_T0}")); A(salu(f"s_addc_u32 s{S_V+1}, s9, 0"))
    for b, sz in ((S_K, 1 << 20), (S_V, 1 << 20), (S_Q, 24576), (S_O, 24576)):
        A(salu(f"s_mov_b32 s{b+2}, {sz}")); A(salu(f"s_mov_b32 s{b+3}, 0x20000"))
    if cfg.stamps:
        A(salu(f"s_mov_b32 s{S_DBG+2}, 256")); A(salu(f"s_mov_b32 s{S_DBG+3}, 0x20000"))
    def dma_tile(which, slot):
        for j in range(8):
            m, d = dma(which, j, slot, cfg.nt); A(m); A(nop(0)); A(d)
        so = S_KOFF if which == 'K' else S_VOFF
        A(salu(f"s_add_u32 s{so}, s{so}, 32768"))
    dma_tile('K', 0)
    for qb in range(3):
        for s in range(8):
            so = "0" if qb == 0 else (f"s{S_8K}" if qb == 1 else f"s{S_16K}")
            q = Q_reg(qb, s)
            A(I(f"buffer_load_dwordx4 {vr(q,4)}, {vr(V_QO)}, s[{S_Q}:{S_Q+3}], {so} offen offset:{s*64}", 'vmem', rd={f"v{V_QO}"}, wr=R('v', q, 4)))
    dma_tile('K', 1)
    dma_tile('V', 0)
    for k in range(192): A(valu(f"v_accvgpr_write_b32 a{k}, 0", (), {f"a{k}"}))
    for q in range(3): A(valu(f"v_mov_b32 {vr(V_L+q)}, 0", (), {f"v{V_L+q}"}))
    o += stamp(cfg, 1)
    for n in range(24):
        A(I(f"s_waitcnt vmcnt({16 + 23 - n})", 'wait'))
        q = V_Q + 4*n
        for r in range(4):
            A(valu(f"v_lshlrev_b32 {vr(V_T+2*r)}, 16, {vr(q+r)}", {f"v{q+r}"}, {f"v{V_T+2*r}"}))
            A(valu(f"v_and_b32 {vr(V_T+2*r+1)}, 0xffff0000, {vr(q+r)}", {f"v{q+r}"}, {f"v{V_T+2*r+1}"}))
        for r in range(8):
            A(valu(f"v_mul_f32 {vr(V_T+r)}, s{S_C}, {vr(V_T+r)}", {f"v{V_T+r}"}, {f"v{V_T+r}"}))
        for r in range(4):
            A(valu(f"v_cvt_pk_bf16_f32 {vr(q+r)}, {vr(V_T+2*r)}, {vr(V_T+2*r+1)}", {f"v{V_T+2*r}", f"v{V_T+2*r+1}"}, {f"v{q+r}"}))
    A(I("s_barrier", 'barrier'))
    o += stamp(cfg, 2)
    pend = []
    for kb in range(2):
        for s in range(8):
            r = k_read(kb, s, 0); A(r); pend.append(r)
            if len(pend) == 15:
                A(I("s_waitcnt lgkmcnt(7)", 'wait')); pend = pend[-7:]
    for kb in range(4):
        for qb in range(3):
            for s in range(8):
                m = mfma_qk(kb, qb, s, czero=True)
                pend = need_wait(o, pend, m)
                A(m)
                if qb == 2 and kb < 2:
                    r = k_read(kb + 2, s, 0); A(r); pend.append(r)
    A(I("s_waitcnt vmcnt(8) lgkmcnt(0)", 'wait'))
    A(I("s_barrier", 'barrier'))
    dma_tile('K', 0)
    pend = []
    for s in range(8):
        r = k_read(0, s, 1); A(r); pend.append(r)
    o += fix_max(0, True)
    A(salu(f"s_mov_b32 s{S_CNT}, 15"))
    o += stamp(cfg, 3)
    return o, pend

def final_pv(cfg, pend):
    o = []
    A = o.append
    par = 1
    A(I("s_waitcnt vmcnt(0) lgkmcnt(0)", 'wait'))
    A(I("s_barrier", 'barrier'))
    pend = []
    reads = [v_read(f >> 1, f & 1, e, par) for f in range(32) for e in range(2)]
    ri = 0
    for k in range(14):
        A(reads[ri]); pend.append(reads[ri]); ri += 1
    for q in range(3):
        A(valu(f"v_add_f32 {vr(V_L+q)}, {vr(V_L+q)}, {vr(V_TS+q)}", {f"v{V_L+q}", f"v{V_TS+q}"}, {f"v{V_L+q}"}))
    for q in range(3):
        o += xlane_reduce("v_add_f32", V_L+q, V_E+1, V_E+2)
    for q in range(3):
        A(trans(f"v_rcp_f32 {vr(V_L+q)}, {vr(V_L+q)}", {f"v{V_L+q}"}, {f"v{V_L+q}"}))
    g = 0
    for db in range(16):
        for qb in range(3):
            for u in range(2):
                m = mfma_pv(db, qb, u, par)
                pend = need_wait(o, pend, m)
                A(m)
                if ri < 64:
                    f = ri >> 1
                    ok = f < 16 or g >= 6*((f - 16) >> 1) + 4 + (f & 1)
                    if ok and len(pend) < 15:
                        A(reads[ri]); pend.append(reads[ri]); ri += 1
                g += 1
    assert ri == 64
    return o

def epilogue(cfg):
    o = [nop(15)]
    A = o.append
    A(valu(f"v_and_b32 {vr(V_X)}, 15, v0", {'v0'}, {f"v{V_X}"}))
    A(valu(f"v_lshlrev_b32 {vr(V_QO)}, 9, {vr(V_X)}", {f"v{V_X}"}, {f"v{V_QO}"}))
    A(valu(f"v_and_b32 {vr(V_X)}, 16, v0", {'v0'}, {f"v{V_X}"}))
    A(valu(f"v_lshl_add_u32 {vr(V_QO)}, {vr(V_X)}, 1, {vr(V_QO)}", {f"v{V_X}", f"v{V_QO}"}, {f"v{V_QO}"}))
    A(valu(f"v_and_b32 {vr(V_X)}, 32, v0", {'v0'}, {f"v{V_X}"}))
    A(valu(f"v_lshrrev_b32 {vr(V_X)}, 1, {vr(V_X)}", {f"v{V_X}"}, {f"v{V_X}"}))
    A(valu(f"v_add_u32 {vr(V_QO)}, {vr(V_QO)}, {vr(V_X)}", {f"v{V_X}", f"v{V_QO}"}, {f"v{V_QO}"}))
    n = 0
    for qb in range(3):
        for u in range(8):
            t = V_S + 8*(n % 6)
            d = V_P + 4*(n % 12)
            a = O_reg(qb, 2*u)
            for r in range(8): A(valu(f"v_accvgpr_read_b32 {vr(t+r)}, {ar(a+r)}", {f"a{a+r}"}, {f"v{t+r}"}))
            for r in range(8): A(valu(f"v_mul_f32 {vr(t+r)}, {vr(t+r)}, {vr(V_L+qb)}", {f"v{t+r}", f"v{V_L+qb}"}, {f"v{t+r}"}))
            for r in range(4): A(valu(f"v_cvt_pk_bf16_f32 {vr(d+r)}, {vr(t+2*r)}, {vr(t+2*r+1)}", {f"v{t+2*r}", f"v{t+2*r+1}"}, {f"v{d+r}"}))
            A(nop(1))
            A(valu(f"v_permlane16_swap_b32 {vr(d)}, {vr(d+2)}", {f"v{d}", f"v{d+2}"}, {f"v{d}", f"v{d+2}"}))
            A(valu(f"v_permlane16_swap_b32 {vr(d+1)}, {vr(d+3)}", {f"v{d+1}", f"v{d+3}"}, {f"v{d+1}", f"v{d+3}"}))
            so = "0" if qb == 0 else (f"s{S_8K}" if qb == 1 else f"s{S_16K}")
            A(I(f"buffer_store_dwordx4 {vr(d,4)}, {vr(V_QO)}, s[{S_O}:{S_O+3}], {so} offen offset:{64*u}", 'vmem',
                rd=R('v', d, 4) | {f"v{V_QO}"}, store=True, data=R('v', d, 4)))
            n += 1
    return o

def dump_stamps(cfg, nst):
    if not cfg.stamps: return []
    o = []
    A = o.append
    A(I("s_waitcnt vmcnt(0)", 'wait'))
    A(I(f"s_memtime s[{S_TM+2*nst}:{S_TM+2*nst+1}]", 'smem'))
    A(I(f"s_memrealtime s[{S_TM+26}:{S_TM+27}]", 'smem'))
    A(I("s_waitcnt lgkmcnt(0)", 'wait'))
    A(salu(f"s_cmp_lg_u32 s2, {cfg.stamp_wg}"))
    A(I("s_cbranch_scc1 L_end", 'branch'))
    A(salu(f"s_cmp_lg_u32 s{S_W}, 0"))
    A(I("s_cbranch_scc1 L_end", 'branch'))
    A(valu(f"v_mov_b32 {vr(V_X)}, 0", (), {f"v{V_X}"}))
    for k in range(1, nst + 1):
        A(salu(f"s_sub_u32 s{S_T0}, s{S_TM+2*k}, s{S_TM}"))
        A(valu(f"v_mov_b32 {vr(V_Y)}, s{S_T0}", (), {f"v{V_Y}"}))
        A(I(f"buffer_store_dword {vr(V_Y)}, {vr(V_X)}, s[{S_DBG}:{S_DBG+3}], 0 offen offset:{4*k}", 'vmem'))
        A(I("s_waitcnt vmcnt(0)", 'wait'))
    A(salu(f"s_sub_u32 s{S_T0}, s{S_TM+26}, s{S_TM+24}"))
    A(valu(f"v_mov_b32 {vr(V_Y)}, s{S_T0}", (), {f"v{V_Y}"}))
    A(I(f"buffer_store_dword {vr(V_Y)}, {vr(V_X)}, s[{S_DBG}:{S_DBG+3}], 0 offen offset:0", 'vmem'))
    return o

def emit(cfg, path, verbose=False):
    lines = []
    def put(seq):
        for x in seq: lines.append("    " + x.text)
    pro, pend0 = prologue(cfg)
    it0, pend1 = flatten(*build_iter(cfg, 0, verbose=verbose), pend0)
    it1, pend2 = flatten(*build_iter(cfg, 1), pend1)
    assert [p.wr for p in pend2] == [p.wr for p in pend0] or len(pend2) <= len(pend0), (pend0, pend2)
    it30, pend3 = flatten(*build_iter(cfg, 0, do_dmaK=False, vmX=63, pre_next=False), pend0)
    fin = final_pv(cfg, pend3)
    epi = epilogue(cfg)
    rare0 = fix_max(1, False)
    rare1 = fix_max(0, False)
    br = lambda t: I(t, 'branch')
    loopctl = [salu(f"s_sub_u32 s{S_CNT}, s{S_CNT}, 1"), salu(f"s_cmp_lg_u32 s{S_CNT}, 0")]
    check_hazards(pro + it0 + [br("x")] + it1 + [br("x")] + loopctl + it0, "main")
    check_hazards(it1 + [br("x")] + loopctl + [br("x")] + it30 + [br("x")] + fin + epi, "tail")
    check_hazards(it0[-40:] + [br("x")] + rare0 + [br("x")] + it1[:40], "rare0")
    check_hazards(it1[-40:] + [br("x")] + rare1 + [br("x")] + loopctl + it0[:40], "rare1")
    check_hazards(it30[-40:] + [br("x")] + rare0 + [br("x")] + fin[:40], "rare30")
    put(pro)
    lines.append(".p2align 6")
    lines.append("L_loop:")
    put(it0)
    lines.append("    s_cbranch_vccnz L_rare0")
    lines.append("L_j0:")
    put(it1)
    lines.append("    s_cbranch_vccnz L_rare1")
    lines.append("L_j1:")
    put(loopctl)
    lines.append("    s_cbranch_scc1 L_loop")
    put(stamp(cfg, 4))
    put(it30)
    lines.append("    s_cbranch_vccnz L_rare30")
    lines.append("L_j30:")
    put(stamp(cfg, 5))
    put(fin)
    put(stamp(cfg, 6))
    put(epi)
    put(dump_stamps(cfg, 7))
    lines.append("L_end:")
    lines.append("    s_endpgm")
    lines.append("L_rare0:")
    put(rare0); lines.append("    s_cmp_eq_u32 s%d, 0" % S_CNT); lines.append("    s_cbranch_scc1 L_j30"); lines.append("    s_branch L_j0")
    lines.append("L_rare1:")
    put(rare1); lines.append("    s_branch L_j1")
    text = "\n".join(lines).replace("L_rare30", "L_rare0")
    hdr = open("cdna_kernels/" + NAME + ".s.ref").read().split("; Override launch geometry")[0]
    out = hdr + f"; @launch grid=(256,1,1) block=(256,1,1) lds={LDS_BYTES}\n"
    out += f""".amdgcn_target "amdgcn-amd-amdhsa--gfx950"
.text
.globl {NAME}_kernel
.p2align 8
.type {NAME}_kernel,@function
{NAME}_kernel:
{text}
.section .rodata,"a"
.p2align 6
.amdhsa_kernel {NAME}_kernel
  .amdhsa_next_free_vgpr 512
  .amdhsa_next_free_sgpr 96
  .amdhsa_accum_offset 256
  .amdhsa_group_segment_fixed_size 0
  .amdhsa_kernarg_size 48
  .amdhsa_user_sgpr_count 2
  .amdhsa_user_sgpr_kernarg_segment_ptr 1
  .amdhsa_system_sgpr_workgroup_id_x 1
.end_amdhsa_kernel
"""
    open(path, "w").write(out)

if __name__ == "__main__":
    ap = argparse.ArgumentParser()
    ap.add_argument("-o", default="cdna_kernels/" + NAME + ".s")
    ap.add_argument("--stamps", action="store_true")
    ap.add_argument("--stamp_wg", type=int, default=0)
    ap.add_argument("--set", action="append", default=[])
    ap.add_argument("-v", action="store_true")
    a = ap.parse_args()
    cfg = Cfg()
    cfg.thr = 4096.0
    cfg.stamps = a.stamps; cfg.stamp_wg = a.stamp_wg
    for kv in a.set:
        k, v = kv.split("=", 1)
        setattr(cfg, k, eval(v))
    emit(cfg, a.o, a.v)
```

```python
import sys, struct, math, argparse

NAME = "standalone__mha_softmax__near_ridge"

def f2u(x): return struct.unpack("<I", struct.pack("<f", x))[0]

V_TID = 0
V_KA = 1
V_VA = 2
V_D0 = 3
V_D1 = 4
V_QO = 5
V_CHK = 6
V_X = 7
V_TS = 8
V_L = 11
V_Y = 14
V_Z = 15
V_T = 16
NT = 8
V_CI = 24
V_E = 36
V_S = 48
V_P = 96
V_Q = 144
NV = 240
A_O = 0
A_F = 192

S_K = 4; S_V = 8; S_Q = 12; S_O = 16
S_W = 20; S_KOFF = 21; S_VOFF = 22; S_MK = 23; S_MV = 24; S_CNT = 25; S_THR = 26
S_8K = 27; S_16K = 28; S_C = 29; S_T0 = 30; S_T1 = 31; S_T2 = 32; S_T3 = 33
S_DBG = 36
S_TM = 40

PIECE = 1056
SUB = 16 * PIECE
TILE = 2 * SUB
VBASE = 2 * TILE
LDS_BYTES = 4 * TILE

def vr(b, n=1): return f"v{b}" if n == 1 else f"v[{b}:{b+n-1}]"
def ar(b, n=1): return f"a{b}" if n == 1 else f"a[{b}:{b+n-1}]"
def R(p, b, n=1): return {f"{p}{i}" for i in range(b, b+n)}

class I:
    def __init__(self, text, kind, rd=(), wr=(), cost=1, **kw):
        self.text = text; self.kind = kind; self.rd = set(rd); self.wr = set(wr); self.cost = cost
        self.__dict__.update(kw)
    def __repr__(self): return self.text

def S_reg(kb, qb): return V_S + (kb*3 + qb)*4
def P_reg(buf, qb, u): return V_P + buf*24 + (qb*2 + u)*4
def Q_reg(qb, s): return V_Q + (qb*8 + s)*4
def O_reg(qb, db): return A_O + (qb*16 + db)*4
def F_reg(idx): return A_F + (idx % 16)*4

def mfma_qk(kb, qb, s, czero=False):
    d = S_reg(kb, qb); a = F_reg(8*kb + s); b = Q_reg(qb, s)
    if s == 0:
        if czero: c = "0"; crd = set()
        else: c = vr(V_CI + 4*qb, 4); crd = R('v', V_CI + 4*qb, 4)
    else:
        c = vr(d, 4); crd = R('v', d, 4)
    return I(f"v_mfma_f32_16x16x32_bf16 {vr(d,4)}, {ar(a,4)}, {vr(b,4)}, {c}", 'mfma',
             rd=R('a', a, 4) | R('v', b, 4) | crd, wr=R('v', d, 4), frag=('K', kb, s), crd=crd)

def mfma_pv(db, qb, u, pbuf):
    d = O_reg(qb, db); a = F_reg(2*db + u); b = P_reg(pbuf, qb, u)
    return I(f"v_mfma_f32_16x16x32_bf16 {ar(d,4)}, {ar(a,4)}, {vr(b,4)}, {ar(d,4)}", 'mfma',
             rd=R('a', a, 4) | R('v', b, 4) | R('a', d, 4), wr=R('a', d, 4), frag=('V', db, u), crd=R('a', d, 4))

def k_read(kb, s, slot):
    a = F_reg(8*kb + s)
    off = slot*TILE + (kb >> 1)*SUB + (kb & 1)*512 + s*64
    return I(f"ds_read_b128 {ar(a,4)}, {vr(V_KA)} offset:{off}", 'lds', rd={f"v{V_KA}"}, wr=R('a', a, 4), frag=('K', kb, s))

def v_read(db, u, e, slot):
    a = F_reg(2*db + u) + 2*e
    off = slot*TILE + u*SUB + e*512 + db*32
    return I(f"ds_read_b64_tr_b16 {ar(a,2)}, {vr(V_VA)} offset:{off}", 'lds', rd={f"v{V_VA}"}, wr=R('a', a, 2), frag=('V', db, u))

def valu(text, rd, wr): return I(text, 'valu', rd=rd, wr=wr)
def trans(text, rd, wr): return I(text, 'trans', rd=rd, wr=wr, cost=2)
def salu(text, rd=(), wr=()): return I(text, 'salu', rd=rd, wr=wr)

def dma(which, j, slot, nt=""):
    srd = S_K if which == 'K' else S_V
    so = S_KOFF if which == 'K' else S_VOFF
    mb = S_MK if which == 'K' else S_MV
    c = slot*TILE + (j >> 2)*4*PIECE + (j & 3)*32
    m = salu(f"s_add_u32 m0, s{mb}, {c}", wr={'m0', 'scc'})
    vo = V_D0 if j < 4 else V_D1
    d = I(f"buffer_load_dwordx4 {vr(vo)}, s[{srd}:{srd+3}], s{so} offen offset:{(j&3)*1024}{nt} lds", 'dma', rd={'m0', f"v{vo}"}, cost=2)
    return m, d

class Cfg:
    Y = 62; X = 168
    dmaV = [1, 6, 11, 16, 21, 26, 31, 36]
    dmaK = [66, 72, 78, 84, 90, 96, 102, 108]
    exp_first = 13
    exp_rate1 = 2.6
    exp_last = 180
    lat = 10
    nt = ""
    ntq = ""
    nto = ""
    stamps = False
    dbg = False

def softmax_ops(pbuf):
    exps = []; plains = []
    n = 0
    for kb in range(4):
        for qb in range(3):
            g = kb*3 + qb
            s = S_reg(kb, qb)
            ts = V_TS + qb
            t = [V_T + ((4*g + k) % NT) for k in range(4)]
            for k in range(4):
                e = trans(f"v_exp_f32 {vr(t[k])}, {vr(s+k)}", {f"v{s+k}"}, {f"v{t[k]}"})
                e.ready = 8*g + 7; e.idx = 4*g + k
                exps.append(e)
            p = P_reg(pbuf, qb, kb >> 1) + 2*(kb & 1)
            b = 4*g
            if kb == 0:
                x = valu(f"v_add_f32 {vr(ts)}, {vr(t[0])}, {vr(t[1])}", {f"v{t[0]}", f"v{t[1]}"}, {f"v{ts}"}); x.after = b+1; plains.append(x)
            else:
                x = valu(f"v_add_f32 {vr(ts)}, {vr(ts)}, {vr(t[0])}", {f"v{t[0]}", f"v{ts}"}, {f"v{ts}"}); x.after = b; plains.append(x)
                x = valu(f"v_add_f32 {vr(ts)}, {vr(ts)}, {vr(t[1])}", {f"v{t[1]}", f"v{ts}"}, {f"v{ts}"}); x.after = b+1; plains.append(x)
            x = valu(f"v_cvt_pk_bf16_f32 {vr(p)}, {vr(t[0])}, {vr(t[1])}", {f"v{t[0]}", f"v{t[1]}"}, {f"v{p}"}); x.after = b+1; plains.append(x)
            x = valu(f"v_add_f32 {vr(ts)}, {vr(ts)}, {vr(t[2])}", {f"v{t[2]}", f"v{ts}"}, {f"v{ts}"}); x.after = b+2; plains.append(x)
            x = valu(f"v_add_f32 {vr(ts)}, {vr(ts)}, {vr(t[3])}", {f"v{t[3]}", f"v{ts}"}, {f"v{ts}"}); x.after = b+3; plains.append(x)
            x = valu(f"v_cvt_pk_bf16_f32 {vr(p+1)}, {vr(t[2])}, {vr(t[3])}", {f"v{t[2]}", f"v{t[3]}"}, {f"v{p+1}"}); x.after = b+3; plains.append(x)
    return exps, plains

def build_iter(cfg, par, do_dmaV=True, do_dmaK=True, vmY=16, vmX=16, pre_next=True, verbose=False):
    kslot = 1 - par; vslot = par; prd = par; pwr = 1 - par
    mf = []
    for kb in range(4):
        for qb in range(3):
            for s in range(8): mf.append(mfma_qk(kb, qb, s))
    for db in range(16):
        for qb in range(3):
            for u in range(2): mf.append(mfma_pv(db, qb, u, prd))
    NG = len(mf)
    lds = []
    for kb in (1, 2, 3):
        for s in range(8):
            r = k_read(kb, s, kslot); r.early = 0 if kb == 1 else 24*kb - 32 + s; r.use = 24*kb + s
            r.use = min(r.use, cfg.Y + 1)
            lds.append(r)
    for f in range(32):
        db, u = f >> 1, f & 1
        e0 = 64 + f if f < 8 else (88 + f - 8 if f < 16 else 96 + 6*(db - 8) + 4 + u)
        for e in range(2):
            r = v_read(db, u, e, vslot); r.early = max(e0, cfg.Y); r.use = min(96 + 6*db + u, cfg.X + 1); lds.append(r)
    if pre_next:
        for s in range(8):
            r = k_read(0, s, par); r.early = max(cfg.X, 148 + 6*(s >> 1) + (s & 1)); r.use = NG + s; r.nxt = True; lds.append(r)
    exps, plains = softmax_ops(pwr)
    n1 = min(48, int((96 - cfg.exp_first) / cfg.exp_rate1))
    for j, e in enumerate(exps):
        if j < n1: e.target = cfg.exp_first + j*cfg.exp_rate1
        else: e.target = 96 + (j - n1) * (cfg.exp_last - 96) / max(1, 48 - n1 - 1)
        e.target = max(e.target, e.ready + 6)
    head = [valu(f"v_add_f32 {vr(V_L+q)}, {vr(V_L+q)}, {vr(V_TS+q)}", {f"v{V_L+q}", f"v{V_TS+q}"}, {f"v{V_L+q}"}) for q in range(3)]
    for h in head: h.after = -1
    tail = [valu(f"v_max3_f32 {vr(V_CHK)}, {vr(V_TS)}, {vr(V_TS+1)}, {vr(V_TS+2)}", R('v', V_TS, 3), {f"v{V_CHK}"}),
            valu(f"v_cmp_nge_f32 vcc, s{S_THR}, {vr(V_CHK)}", {f"v{V_CHK}"}, {'vcc'})]
    for t in tail: t.after = 47
    plains = head + plains + tail
    dmas = {}
    scal = {g: [] for g in range(NG)}
    if do_dmaV:
        for j, g in enumerate(cfg.dmaV):
            m, d = dma('V', j, 1 - par, cfg.nt); dmas[g] = d; scal[g-1].append(m)
        scal[cfg.dmaV[-1] + 1].append(salu(f"s_add_u32 s{S_VOFF}, s{S_VOFF}, 32768", wr={'scc'}))
    if do_dmaK:
        for j, g in enumerate(cfg.dmaK):
            assert g > cfg.Y
            m, d = dma('K', j, 1 - par, cfg.nt); dmas[g] = d; scal[g-1].append(m)
        scal[cfg.dmaK[-1] + 1].append(salu(f"s_add_u32 s{S_KOFF}, s{S_KOFF}, 32768", wr={'scc'}))
    vec = {g: [] for g in range(NG)}
    li = ei = pi = 0
    exp_gap = {}
    last_reader = {}
    def temp_free(e):
        prev = e.idx - NT
        if prev < 0: return True
        t = next(iter(e.wr))
        for k in range(pi, len(plains)):
            if t in plains[k].rd and plains[k].after < e.idx: return False
        return True
    for g in range(NG):
        if g in dmas:
            vec[g].append(dmas[g]); continue
        cap = 2
        def lds_ok(k): return k < len(lds) and lds[k].early <= g
        def lds_slack(k):
            sl = 1e9
            for n, r in enumerate(lds[k:k+24]):
                sl = min(sl, r.use - cfg.lat - (g + n*1.4))
            return sl
        want_exp = ei < len(exps) and exps[ei].target <= g and temp_free(exps[ei])
        urgent = lds_ok(li) and lds_slack(li) <= 1
        if want_exp and not urgent:
            vec[g].append(exps[ei]); exp_gap[ei] = g; ei += 1; continue
        if lds_ok(li):
            vec[g].append(lds[li]); lds[li].gap = g; li += 1; cap -= 1
            plain_ready = pi < len(plains) and (plains[pi].after < 0 or (plains[pi].after in exp_gap and exp_gap[plains[pi].after] < g))
            if lds_ok(li) and (lds_slack(li) <= 0 or (not plain_ready and lds_slack(li) <= 12)):
                vec[g].append(lds[li]); lds[li].gap = g; li += 1; cap -= 1
        while cap > 0 and pi < len(plains) and (plains[pi].after < 0 or (plains[pi].after in exp_gap and exp_gap[plains[pi].after] < g)):
            vec[g].append(plains[pi]); pi += 1; cap -= 1
    assert li == len(lds), (li, len(lds))
    assert ei == len(exps) and pi == len(plains), (ei, pi, len(plains))
    if verbose:
        code = {'lds': 'd', 'valu': 'a', 'trans': 'E', 'dma': 'M'}
        s = ""
        for g in range(NG):
            s += "".join(code[x.kind] for x in vec[g]).ljust(2, '.') + " "
            if g % 24 == 23: s += "\n"
        sys.stderr.write(s + "\n")
    scal[cfg.Y - 1].append(I(f"s_waitcnt vmcnt({vmY}) lgkmcnt(0)", 'wait', lg=0))
    scal[cfg.Y - 1].append(I("s_barrier", 'barrier'))
    scal[cfg.X - 1].append(I(f"s_waitcnt vmcnt({vmX}) lgkmcnt(0)", 'wait', lg=0))
    scal[cfg.X - 1].append(I("s_barrier", 'barrier'))
    for r in lds:
        if r.frag[0] == 'K' and not getattr(r, 'nxt', False): assert r.gap < cfg.Y - 1 - 4, (r, r.gap)
        if r.frag[0] == 'V': assert cfg.Y - 1 <= r.gap < cfg.X - 1 - 4, (r, r.gap)
        if getattr(r, 'nxt', False): assert r.gap >= cfg.X - 1
    return mf, scal, vec

def flatten(mf, scal, vec, pending):
    out = []
    pend = list(pending)
    NG = len(mf)
    for g in range(NG):
        if g == 0:
            pend = need_wait(out, pend, mf[0])
        out.append(mf[g])
        for x in scal[g]:
            out.append(x)
            if x.kind == 'wait' and getattr(x, 'lg', None) == 0: pend = []
        if g + 1 < NG:
            pend = need_wait(out, pend, mf[g+1])
            for x in vec[g]:
                if x.kind == 'lds': assert not (x.wr & mf[g+1].rd), ("read too late", x, mf[g+1])
        for x in vec[g]:
            out.append(x)
            if x.kind == 'lds': pend.append(x)
    return out, pend

def need_wait(out, pend, m):
    last = -1
    for k, r in enumerate(pend):
        if r.wr & m.rd: last = k
    if last >= 0:
        n = len(pend) - 1 - last
        n = min(n, 15)
        out.append(I(f"s_waitcnt lgkmcnt({n})", 'wait'))
        pend = pend[len(pend) - n:] if n > 0 else []
    return pend

def states(x):
    if x.text.startswith("s_nop"): return int(x.text.split()[1]) + 1
    return 1

def check_hazards(seq, label):
    n = len(seq)
    for i, p in enumerate(seq):
        dist = 0
        for j in range(i+1, min(n, i+24)):
            c = seq[j]
            need = 0
            if p.kind == 'mfma':
                if c.kind in ('valu', 'trans', 'vmem', 'lds', 'dma') and (p.wr & (c.rd | c.wr)): need = 8
                if c.kind == 'mfma':
                    ab = c.rd - c.crd
                    if p.wr & ab: need = 8
                    if (p.wr & c.crd) and p.wr != c.crd: need = 6
                if c.kind in ('valu', 'trans') and (p.crd & c.wr): need = max(need, 3)
            if p.kind in ('valu', 'trans'):
                if c.kind == 'mfma' and (p.wr & c.rd): need = 2
                if p.kind == 'trans' and c.kind == 'valu' and (p.wr & c.rd): need = 1
                if c.text.startswith("v_permlane") and (p.wr & c.rd): need = 2
                if c.text.startswith("v_readfirstlane") and (p.wr & c.rd): need = 1
                sw = {w for w in p.wr if w.startswith('s') or w == 'vcc'}
                if sw and c.kind in ('valu', 'trans') and (sw & c.rd): need = max(need, 2)
                if sw and c.kind in ('vmem', 'dma') and (sw & c.rd): need = max(need, 5)
            if p.kind == 'salu' and 'm0' in p.wr and c.kind == 'dma': need = 1
            if p.kind == 'vmem' and getattr(p, 'store', False) and c.kind in ('valu', 'trans') and (p.data & c.wr): need = 2
            if dist < need:
                raise Exception(f"hazard in {label}: '{p.text}' -> '{c.text}' dist {dist} need {need}")
            dist += states(c)

def nop(n): return I(f"s_nop {n}", 'nop')

def xlane_reduce(op, x, ta, tb):
    o = []
    for sw in ("v_permlane16_swap_b32", "v_permlane32_swap_b32"):
        o.append(valu(f"v_mov_b32 {vr(ta)}, {vr(x)}", {f"v{x}"}, {f"v{ta}"}))
        o.append(valu(f"v_mov_b32 {vr(tb)}, {vr(x)}", {f"v{x}"}, {f"v{tb}"}))
        o.append(nop(1))
        o.append(valu(f"{sw} {vr(ta)}, {vr(tb)}", {f"v{ta}", f"v{tb}"}, {f"v{ta}", f"v{tb}"}))
        o.append(nop(1))
        o.append(valu(f"{op} {vr(x)}, {vr(ta)}, {vr(tb)}", {f"v{ta}", f"v{tb}"}, {f"v{x}"}))
    return o

def fix_max(pwr, first):
    o = [nop(15), nop(7)]
    for qb in range(3):
        dl = V_E + 0; ta = V_E + 1; tb = V_E + 2; f = V_E + 3
        regs = [S_reg(kb, qb) + r for kb in range(4) for r in range(4)]
        o.append(valu(f"v_max3_f32 {vr(dl)}, {vr(regs[0])}, {vr(regs[1])}, {vr(regs[2])}", {f"v{r}" for r in regs[:3]}, {f"v{dl}"}))
        for k in range(3, 15, 2):
            o.append(valu(f"v_max3_f32 {vr(dl)}, {vr(dl)}, {vr(regs[k])}, {vr(regs[k+1])}", {f"v{dl}", f"v{regs[k]}", f"v{regs[k+1]}"}, {f"v{dl}"}))
        o.append(valu(f"v_max_f32 {vr(dl)}, {vr(dl)}, {vr(regs[15])}", {f"v{dl}", f"v{regs[15]}"}, {f"v{dl}"}))
        o += xlane_reduce("v_max_f32", dl, ta, tb)
        if not first:
            o.append(valu(f"v_max_f32 {vr(dl)}, 0, {vr(dl)}", {f"v{dl}"}, {f"v{dl}"}))
        else:
            o.append(valu(f"v_max_f32 {vr(dl)}, 0xff7fffff, {vr(dl)}", {f"v{dl}"}, {f"v{dl}"}))
        for r in range(4):
            c = V_CI + 4*qb + r
            if first: o.append(valu(f"v_sub_f32 {vr(c)}, 0, {vr(dl)}", {f"v{dl}"}, {f"v{c}"}))
            else: o.append(valu(f"v_sub_f32 {vr(c)}, {vr(c)}, {vr(dl)}", {f"v{dl}", f"v{c}"}, {f"v{c}"}))
        if not first:
            o.append(trans(f"v_exp_f32 {vr(f)}, -{vr(dl)}", {f"v{dl}"}, {f"v{f}"}))
            o.append(nop(0))
            o.append(valu(f"v_mul_f32 {vr(V_L+qb)}, {vr(V_L+qb)}, {vr(f)}", {f"v{f}", f"v{V_L+qb}"}, {f"v{V_L+qb}"}))
            for k in range(0, 64, 4):
                a = O_reg(qb, 0) + k
                for r in range(4): o.append(valu(f"v_accvgpr_read_b32 {vr(V_T+r)}, {ar(a+r)}", {f"a{a+r}"}, {f"v{V_T+r}"}))
                for r in range(4): o.append(valu(f"v_mul_f32 {vr(V_T+r)}, {vr(V_T+r)}, {vr(f)}", {f"v{V_T+r}", f"v{f}"}, {f"v{V_T+r}"}))
                for r in range(4): o.append(valu(f"v_accvgpr_write_b32 {ar(a+r)}, {vr(V_T+r)}", {f"v{V_T+r}"}, {f"a{a+r}"}))
        ts = V_TS + qb
        for kb in range(4):
            s = S_reg(kb, qb); t = V_T + 4*(kb & 1)
            for r in range(4): o.append(valu(f"v_sub_f32 {vr(t+r)}, {vr(s+r)}, {vr(dl)}", {f"v{s+r}", f"v{dl}"}, {f"v{t+r}"}))
            for r in range(4): o.append(trans(f"v_exp_f32 {vr(t+r)}, {vr(t+r)}", {f"v{t+r}"}, {f"v{t+r}"}))
            if kb == 0:
                o.append(valu(f"v_add_f32 {vr(ts)}, {vr(t)}, {vr(t+1)}", {f"v{t}", f"v{t+1}"}, {f"v{ts}"}))
            else:
                o.append(valu(f"v_add_f32 {vr(ts)}, {vr(ts)}, {vr(t)}", {f"v{t}", f"v{ts}"}, {f"v{ts}"}))
                o.append(valu(f"v_add_f32 {vr(ts)}, {vr(ts)}, {vr(t+1)}", {f"v{t+1}", f"v{ts}"}, {f"v{ts}"}))
            o.append(valu(f"v_add_f32 {vr(ts)}, {vr(ts)}, {vr(t+2)}", {f"v{t+2}", f"v{ts}"}, {f"v{ts}"}))
            o.append(valu(f"v_add_f32 {vr(ts)}, {vr(ts)}, {vr(t+3)}", {f"v{t+3}", f"v{ts}"}, {f"v{ts}"}))
            p = P_reg(pwr, qb, kb >> 1) + 2*(kb & 1)
            o.append(valu(f"v_cvt_pk_bf16_f32 {vr(p)}, {vr(t)}, {vr(t+1)}", {f"v{t}", f"v{t+1}"}, {f"v{p}"}))
            o.append(valu(f"v_cvt_pk_bf16_f32 {vr(p+1)}, {vr(t+2)}, {vr(t+3)}", {f"v{t+2}", f"v{t+3}"}, {f"v{p+1}"}))
    o.append(nop(3))
    return o

def stamp(cfg, k):
    if not cfg.stamps: return []
    return [I(f"s_memtime s[{S_TM+2*k}:{S_TM+2*k+1}]", 'smem')]

def prologue(cfg):
    o = []
    A = o.append
    A(salu("s_cmp_ge_u32 s2, 256"))
    A(I("s_cbranch_scc1 L_end", 'branch'))
    if cfg.stamps:
        A(I(f"s_memrealtime s[{S_TM+24}:{S_TM+25}]", 'smem'))
    o += stamp(cfg, 0)
    A(I("s_load_dwordx4 s[4:7], s[0:1], 0", 'smem'))
    A(I("s_load_dwordx4 s[8:11], s[0:1], 16", 'smem'))
    if cfg.stamps:
        A(I(f"s_load_dwordx2 s[{S_DBG}:{S_DBG+1}], s[0:1], {32 if cfg.dbg else 40}", 'smem'))
    A(valu(f"v_lshrrev_b32 {vr(V_X)}, 6, v0", {'v0'}, {f"v{V_X}"}))
    A(valu(f"v_and_b32 {vr(V_Y)}, 63, v0", {'v0'}, {f"v{V_Y}"}))
    A(valu(f"v_readfirstlane_b32 s{S_W}, {vr(V_X)}", {f"v{V_X}"}, {f"s{S_W}"}))
    A(salu(f"s_and_b32 s{S_T0}, s2, 7"))
    A(salu(f"s_lshl_b32 s{S_T0}, s{S_T0}, 4"))
    A(salu(f"s_lshr_b32 s{S_T1}, s2, 4"))
    A(salu(f"s_add_u32 s{S_T0}, s{S_T0}, s{S_T1}"))
    A(salu(f"s_lshr_b32 s{S_T1}, s2, 3"))
    A(salu(f"s_and_b32 s{S_T1}, s{S_T1}, 1"))
    A(salu(f"s_mul_i32 s{S_T2}, s{S_T0}, 196608"))
    A(salu(f"s_mul_i32 s{S_T1}, s{S_T1}, 98304"))
    A(salu(f"s_add_u32 s{S_T2}, s{S_T2}, s{S_T1}"))
    A(salu(f"s_mul_i32 s{S_T1}, s{S_W}, 24576"))
    A(salu(f"s_add_u32 s{S_T2}, s{S_T2}, s{S_T1}"))
    A(salu(f"s_lshl_b32 s{S_T0}, s{S_T0}, 20"))
    A(valu(f"v_lshlrev_b32 {vr(V_D0)}, 4, {vr(V_Y)}", {f"v{V_Y}"}, {f"v{V_D0}"}))
    A(valu(f"v_lshl_add_u32 {vr(V_D0)}, {vr(V_X)}, 13, {vr(V_D0)}", {f"v{V_X}", f"v{V_D0}"}, {f"v{V_D0}"}))
    A(valu(f"v_add_u32 {vr(V_D1)}, 4096, {vr(V_D0)}", {f"v{V_D0}"}, {f"v{V_D1}"}))
    A(valu(f"v_and_b32 {vr(V_X)}, 15, {vr(V_Y)}", {f"v{V_Y}"}, {f"v{V_X}"}))
    A(valu(f"v_lshrrev_b32 {vr(V_Z)}, 4, {vr(V_Y)}", {f"v{V_Y}"}, {f"v{V_Z}"}))
    A(valu(f"v_lshlrev_b32 {vr(V_Z)}, 4, {vr(V_Z)}", {f"v{V_Z}"}, {f"v{V_Z}"}))
    A(valu(f"v_lshl_add_u32 {vr(V_QO)}, {vr(V_X)}, 9, {vr(V_Z)}", {f"v{V_X}", f"v{V_Z}"}, {f"v{V_QO}"}))
    A(valu(f"v_mul_u32_u24 {vr(V_KA)}, {PIECE}, {vr(V_X)}", {f"v{V_X}"}, {f"v{V_KA}"}))
    A(valu(f"v_add_u32 {vr(V_KA)}, {vr(V_KA)}, {vr(V_Z)}", {f"v{V_KA}", f"v{V_Z}"}, {f"v{V_KA}"}))
    A(valu(f"v_lshrrev_b32 {vr(V_X)}, 2, {vr(V_Y)}", {f"v{V_Y}"}, {f"v{V_X}"}))
    A(valu(f"v_mul_u32_u24 {vr(V_VA)}, {PIECE}, {vr(V_X)}", {f"v{V_X}"}, {f"v{V_VA}"}))
    A(valu(f"v_and_b32 {vr(V_X)}, 3, {vr(V_Y)}", {f"v{V_Y}"}, {f"v{V_X}"}))
    A(valu(f"v_lshl_add_u32 {vr(V_VA)}, {vr(V_X)}, 3, {vr(V_VA)}", {f"v{V_X}", f"v{V_VA}"}, {f"v{V_VA}"}))
    A(valu(f"v_add_u32 {vr(V_VA)}, {VBASE}, {vr(V_VA)}", {f"v{V_VA}"}, {f"v{V_VA}"}))
    A(salu(f"s_mul_i32 s{S_MK}, s{S_W}, {8*PIECE}"))
    A(salu(f"s_add_u32 s{S_MV}, s{S_MK}, {VBASE}"))
    A(salu(f"s_mov_b32 s{S_KOFF}, 0"))
    A(salu(f"s_mov_b32 s{S_VOFF}, 0"))
    A(salu(f"s_mov_b32 s{S_8K}, 8192"))
    A(salu(f"s_mov_b32 s{S_16K}, 16384"))
    A(salu(f"s_mov_b32 s{S_C}, 0x{f2u(math.log2(math.e)/16):08x}"))
    A(salu(f"s_mov_b32 s{S_THR}, 0x{f2u(cfg.thr):08x}"))
    A(I("s_waitcnt lgkmcnt(0)", 'wait'))
    A(salu(f"s_add_u32 s{S_Q}, s4, s{S_T2}")); A(salu(f"s_addc_u32 s{S_Q+1}, s5, 0"))
    A(salu(f"s_add_u32 s{S_O}, s10, s{S_T2}")); A(salu(f"s_addc_u32 s{S_O+1}, s11, 0"))
    A(salu(f"s_add_u32 s{S_K}, s6, s{S_T0}")); A(salu(f"s_addc_u32 s{S_K+1}, s7, 0"))
    A(salu(f"s_add_u32 s{S_V}, s8, s{S_T0}")); A(salu(f"s_addc_u32 s{S_V+1}, s9, 0"))
    for b, sz in ((S_K, 1 << 20), (S_V, 1 << 20), (S_Q, 24576), (S_O, 24576)):
        A(salu(f"s_mov_b32 s{b+2}, {sz}")); A(salu(f"s_mov_b32 s{b+3}, 0x20000"))
    if cfg.stamps:
        A(salu(f"s_mov_b32 s{S_DBG+2}, {64 if cfg.dbg else 0x100000}")); A(salu(f"s_mov_b32 s{S_DBG+3}, 0x20000"))
    def dma_tile(which, slot):
        for j in range(8):
            m, d = dma(which, j, slot, cfg.nt); A(m); A(nop(0)); A(d)
        so = S_KOFF if which == 'K' else S_VOFF
        A(salu(f"s_add_u32 s{so}, s{so}, 32768"))
    dma_tile('K', 0)
    for qb in range(3):
        for s in range(8):
            so = "0" if qb == 0 else (f"s{S_8K}" if qb == 1 else f"s{S_16K}")
            q = Q_reg(qb, s)
            A(I(f"buffer_load_dwordx4 {vr(q,4)}, {vr(V_QO)}, s[{S_Q}:{S_Q+3}], {so} offen offset:{s*64}{cfg.ntq}", 'vmem', rd={f"v{V_QO}"}, wr=R('v', q, 4)))
    dma_tile('K', 1)
    dma_tile('V', 0)
    for k in range(192): A(valu(f"v_accvgpr_write_b32 a{k}, 0", (), {f"a{k}"}))
    for q in range(3): A(valu(f"v_mov_b32 {vr(V_L+q)}, 0", (), {f"v{V_L+q}"}))
    o += stamp(cfg, 1)
    for n in range(24):
        A(I(f"s_waitcnt vmcnt({16 + 23 - n})", 'wait'))
        q = V_Q + 4*n
        for r in range(4):
            A(valu(f"v_lshlrev_b32 {vr(V_T+2*r)}, 16, {vr(q+r)}", {f"v{q+r}"}, {f"v{V_T+2*r}"}))
            A(valu(f"v_and_b32 {vr(V_T+2*r+1)}, 0xffff0000, {vr(q+r)}", {f"v{q+r}"}, {f"v{V_T+2*r+1}"}))
        for r in range(8):
            A(valu(f"v_mul_f32 {vr(V_T+r)}, s{S_C}, {vr(V_T+r)}", {f"v{V_T+r}"}, {f"v{V_T+r}"}))
        for r in range(4):
            A(valu(f"v_cvt_pk_bf16_f32 {vr(q+r)}, {vr(V_T+2*r)}, {vr(V_T+2*r+1)}", {f"v{V_T+2*r}", f"v{V_T+2*r+1}"}, {f"v{q+r}"}))
    A(I("s_barrier", 'barrier'))
    o += stamp(cfg, 2)
    pend = []
    for kb in range(2):
        for s in range(8):
            r = k_read(kb, s, 0); A(r); pend.append(r)
            if len(pend) == 15:
                A(I("s_waitcnt lgkmcnt(7)", 'wait')); pend = pend[-7:]
    for kb in range(4):
        for qb in range(3):
            for s in range(8):
                m = mfma_qk(kb, qb, s, czero=True)
                pend = need_wait(o, pend, m)
                A(m)
                if qb == 2 and kb < 2:
                    r = k_read(kb + 2, s, 0); A(r); pend.append(r)
    A(I("s_waitcnt vmcnt(8) lgkmcnt(0)", 'wait'))
    A(I("s_barrier", 'barrier'))
    dma_tile('K', 0)
    pend = []
    for s in range(8):
        r = k_read(0, s, 1); A(r); pend.append(r)
    o += fix_max(0, True)
    A(salu(f"s_mov_b32 s{S_CNT}, 15"))
    o += stamp(cfg, 3)
    return o, pend

def final_pv(cfg, pend):
    o = []
    A = o.append
    par = 1
    A(I("s_waitcnt vmcnt(0) lgkmcnt(0)", 'wait'))
    A(I("s_barrier", 'barrier'))
    pend = []
    reads = [v_read(f >> 1, f & 1, e, par) for f in range(32) for e in range(2)]
    ri = 0
    for k in range(14):
        A(reads[ri]); pend.append(reads[ri]); ri += 1
    for q in range(3):
        A(valu(f"v_add_f32 {vr(V_L+q)}, {vr(V_L+q)}, {vr(V_TS+q)}", {f"v{V_L+q}", f"v{V_TS+q}"}, {f"v{V_L+q}"}))
    for q in range(3):
        o += xlane_reduce("v_add_f32", V_L+q, V_E+1, V_E+2)
    for q in range(3):
        A(trans(f"v_rcp_f32 {vr(V_L+q)}, {vr(V_L+q)}", {f"v{V_L+q}"}, {f"v{V_L+q}"}))
    g = 0
    for db in range(16):
        for qb in range(3):
            for u in range(2):
                m = mfma_pv(db, qb, u, par)
                pend = need_wait(o, pend, m)
                A(m)
                if ri < 64:
                    f = ri >> 1
                    ok = f < 16 or g >= 6*((f - 16) >> 1) + 4 + (f & 1)
                    if ok and len(pend) < 15:
                        A(reads[ri]); pend.append(reads[ri]); ri += 1
                g += 1
    assert ri == 64
    return o

def epilogue(cfg):
    o = [nop(15)]
    A = o.append
    A(valu(f"v_and_b32 {vr(V_X)}, 15, v0", {'v0'}, {f"v{V_X}"}))
    A(valu(f"v_lshlrev_b32 {vr(V_QO)}, 9, {vr(V_X)}", {f"v{V_X}"}, {f"v{V_QO}"}))
    A(valu(f"v_and_b32 {vr(V_X)}, 16, v0", {'v0'}, {f"v{V_X}"}))
    A(valu(f"v_lshl_add_u32 {vr(V_QO)}, {vr(V_X)}, 1, {vr(V_QO)}", {f"v{V_X}", f"v{V_QO}"}, {f"v{V_QO}"}))
    A(valu(f"v_and_b32 {vr(V_X)}, 32, v0", {'v0'}, {f"v{V_X}"}))
    A(valu(f"v_lshrrev_b32 {vr(V_X)}, 1, {vr(V_X)}", {f"v{V_X}"}, {f"v{V_X}"}))
    A(valu(f"v_add_u32 {vr(V_QO)}, {vr(V_QO)}, {vr(V_X)}", {f"v{V_X}", f"v{V_QO}"}, {f"v{V_QO}"}))
    n = 0
    for qb in range(3):
        for u in range(8):
            t = V_S + 8*(n % 6)
            d = V_P + 4*(n % 12)
            a = O_reg(qb, 2*u)
            for r in range(8): A(valu(f"v_accvgpr_read_b32 {vr(t+r)}, {ar(a+r)}", {f"a{a+r}"}, {f"v{t+r}"}))
            for r in range(8): A(valu(f"v_mul_f32 {vr(t+r)}, {vr(t+r)}, {vr(V_L+qb)}", {f"v{t+r}", f"v{V_L+qb}"}, {f"v{t+r}"}))
            for r in range(4): A(valu(f"v_cvt_pk_bf16_f32 {vr(d+r)}, {vr(t+2*r)}, {vr(t+2*r+1)}", {f"v{t+2*r}", f"v{t+2*r+1}"}, {f"v{d+r}"}))
            A(nop(1))
            A(valu(f"v_permlane16_swap_b32 {vr(d)}, {vr(d+2)}", {f"v{d}", f"v{d+2}"}, {f"v{d}", f"v{d+2}"}))
            A(valu(f"v_permlane16_swap_b32 {vr(d+1)}, {vr(d+3)}", {f"v{d+1}", f"v{d+3}"}, {f"v{d+1}", f"v{d+3}"}))
            so = "0" if qb == 0 else (f"s{S_8K}" if qb == 1 else f"s{S_16K}")
            A(I(f"buffer_store_dwordx4 {vr(d,4)}, {vr(V_QO)}, s[{S_O}:{S_O+3}], {so} offen offset:{64*u}{cfg.nto}", 'vmem',
                rd=R('v', d, 4) | {f"v{V_QO}"}, store=True, data=R('v', d, 4)))
            n += 1
    return o

def dump_stamps(cfg, nst):
    if not cfg.stamps: return []
    o = []
    A = o.append
    A(I("s_waitcnt vmcnt(0)", 'wait'))
    A(I(f"s_memtime s[{S_TM+2*nst}:{S_TM+2*nst+1}]", 'smem'))
    A(I(f"s_memrealtime s[{S_TM+26}:{S_TM+27}]", 'smem'))
    A(I(f"s_getreg_b32 s{S_T3}, hwreg(HW_REG_XCC_ID)", 'salu'))
    A(I("s_waitcnt lgkmcnt(0)", 'wait'))
    A(salu(f"s_lshl_b32 s{S_T1}, s2, 2"))
    A(salu(f"s_add_u32 s{S_T1}, s{S_T1}, s{S_W}"))
    A(salu(f"s_lshl_b32 s{S_T1}, s{S_T1}, 6"))
    A(valu(f"v_mov_b32 {vr(V_X)}, s{S_T1}", (), {f"v{V_X}"}))
    def st(src, k):
        A(valu(f"v_mov_b32 {vr(V_Y)}, {src}", (), {f"v{V_Y}"}))
        A(I(f"buffer_store_dword {vr(V_Y)}, {vr(V_X)}, s[{S_DBG}:{S_DBG+3}], 0 offen offset:{4*k}", 'vmem'))
        A(I("s_waitcnt vmcnt(0)", 'wait'))
    for k in range(1, nst + 1):
        A(salu(f"s_sub_u32 s{S_T0}, s{S_TM+2*k}, s{S_TM}"))
        st(f"s{S_T0}", k)
    st(f"s{S_TM+24}", 12)
    st(f"s{S_TM+26}", 13)
    st(f"s{S_T3}", 14)
    return o

def emit(cfg, path, verbose=False):
    lines = []
    def put(seq):
        for x in seq: lines.append("    " + x.text)
    pro, pend0 = prologue(cfg)
    it0, pend1 = flatten(*build_iter(cfg, 0, verbose=verbose), pend0)
    it1, pend2 = flatten(*build_iter(cfg, 1), pend1)
    assert [p.wr for p in pend2] == [p.wr for p in pend0] or len(pend2) <= len(pend0), (pend0, pend2)
    it30, pend3 = flatten(*build_iter(cfg, 0, do_dmaK=False, vmX=63, pre_next=False), pend0)
    fin = final_pv(cfg, pend3)
    epi = epilogue(cfg)
    rare0 = fix_max(1, False)
    rare1 = fix_max(0, False)
    br = lambda t: I(t, 'branch')
    loopctl = [salu(f"s_sub_u32 s{S_CNT}, s{S_CNT}, 1"), salu(f"s_cmp_lg_u32 s{S_CNT}, 0")]
    check_hazards(pro + it0 + [br("x")] + it1 + [br("x")] + loopctl + it0, "main")
    check_hazards(it1 + [br("x")] + loopctl + [br("x")] + it30 + [br("x")] + fin + epi, "tail")
    check_hazards(it0[-40:] + [br("x")] + rare0 + [br("x")] + it1[:40], "rare0")
    check_hazards(it1[-40:] + [br("x")] + rare1 + [br("x")] + loopctl + it0[:40], "rare1")
    check_hazards(it30[-40:] + [br("x")] + rare0 + [br("x")] + fin[:40], "rare30")
    put(pro)
    lines.append(".p2align 6")
    lines.append("L_loop:")
    put(it0)
    lines.append("    s_cbranch_vccnz L_rare0")
    lines.append("L_j0:")
    put(it1)
    lines.append("    s_cbranch_vccnz L_rare1")
    lines.append("L_j1:")
    put(loopctl)
    lines.append("    s_cbranch_scc1 L_loop")
    put(stamp(cfg, 4))
    put(it30)
    lines.append("    s_cbranch_vccnz L_rare30")
    lines.append("L_j30:")
    put(stamp(cfg, 5))
    put(fin)
    put(stamp(cfg, 6))
    put(epi)
    put(dump_stamps(cfg, 7))
    lines.append("L_end:")
    lines.append("    s_endpgm")
    lines.append("L_rare0:")
    put(rare0); lines.append("    s_cmp_eq_u32 s%d, 0" % S_CNT); lines.append("    s_cbranch_scc1 L_j30"); lines.append("    s_branch L_j0")
    lines.append("L_rare1:")
    put(rare1); lines.append("    s_branch L_j1")
    text = "\n".join(lines).replace("L_rare30", "L_rare0")
    hdr = open("cdna_kernels/" + NAME + ".s.ref").read().split("; Override launch geometry")[0]
    out = hdr + f"; @launch grid=(256,1,1) block=(256,1,1) lds={LDS_BYTES}\n"
    out += f""".amdgcn_target "amdgcn-amd-amdhsa--gfx950"
.text
.globl {NAME}_kernel
.p2align 8
.type {NAME}_kernel,@function
{NAME}_kernel:
{text}
.section .rodata,"a"
.p2align 6
.amdhsa_kernel {NAME}_kernel
  .amdhsa_next_free_vgpr 512
  .amdhsa_next_free_sgpr 96
  .amdhsa_accum_offset 256
  .amdhsa_group_segment_fixed_size 0
  .amdhsa_kernarg_size 48
  .amdhsa_user_sgpr_count 2
  .amdhsa_user_sgpr_kernarg_segment_ptr 1
  .amdhsa_system_sgpr_workgroup_id_x 1
.end_amdhsa_kernel
"""
    open(path, "w").write(out)

if __name__ == "__main__":
    ap = argparse.ArgumentParser()
    ap.add_argument("-o", default="cdna_kernels/" + NAME + ".s")
    ap.add_argument("--stamps", action="store_true")
    ap.add_argument("--stamp_wg", type=int, default=0)
    ap.add_argument("--set", action="append", default=[])
    ap.add_argument("-v", action="store_true")
    a = ap.parse_args()
    cfg = Cfg()
    cfg.thr = 4096.0
    cfg.stamps = a.stamps; cfg.stamp_wg = a.stamp_wg
    for kv in a.set:
        k, v = kv.split("=", 1)
        setattr(cfg, k, eval(v))
    emit(cfg, a.o, a.v)
```

```python
import sys, struct, math, argparse

NAME = "standalone__mha_softmax__near_ridge"

def f2u(x): return struct.unpack("<I", struct.pack("<f", x))[0]

V_KA = 1
V_VA = 2
V_D0 = 3
V_D1 = 4
V_QO = 5
V_CHK = 6
V_X = 7
V_TS = 8
V_L = 14
V_Y = 20
V_Z = 21
V_EW = 22
V_ER = 23
V_T = 24
NT = 8
V_CI = 32
V_E = 44
V_S = 48
V_P = 96
V_Q = 144
V_PF = 240
A_O = 0
A_F = 192

S_K = 4; S_V = 8; S_Q = 12; S_O = 16
S_W = 20; S_KOFF = 21; S_VOFF = 22; S_MK = 23; S_MV = 24; S_CNT = 25; S_THR = 26
S_8K = 27; S_16K = 28; S_C = 29; S_T0 = 30; S_T1 = 31; S_T2 = 32; S_T3 = 33
S_PC = 34
S_DBG = 36
S_TM = 40

PIECE = 1056
SUB = 16 * PIECE
TILE = 2 * SUB
VBASE = 2 * TILE
LDS_BYTES = 4 * TILE
EROW = 144
EBLK = 16 * EROW

def vr(b, n=1): return f"v{b}" if n == 1 else f"v[{b}:{b+n-1}]"
def ar(b, n=1): return f"a{b}" if n == 1 else f"a[{b}:{b+n-1}]"
def R(p, b, n=1): return {f"{p}{i}" for i in range(b, b+n)}
def V(*regs): return {f"v{r}" for r in regs}

class I:
    def __init__(self, text, kind, rd=(), wr=(), cost=1, **kw):
        self.text = text; self.kind = kind; self.rd = set(rd); self.wr = set(wr); self.cost = cost
        self.__dict__.update(kw)
    def __repr__(self): return self.text

def S_reg(kb, qb): return V_S + (kb*3 + qb)*4
def P_reg(buf, qb, u): return V_P + buf*24 + (qb*2 + u)*4
def Q_reg(qb, s): return V_Q + (qb*8 + s)*4
def O_reg(qb, db): return A_O + (qb*16 + db)*4
def F_reg(idx): return A_F + (idx % 16)*4
def TS(qb): return V_TS + 2*qb
def LL(qb): return V_L + 2*qb

def mfma_qk(kb, qb, s, czero=False, fidx=None):
    d = S_reg(kb, qb); a = F_reg(8*kb + s if fidx is None else fidx); b = Q_reg(qb, s)
    if s == 0:
        if czero: c = "0"; crd = set()
        else: c = vr(V_CI + 4*qb, 4); crd = R('v', V_CI + 4*qb, 4)
    else:
        c = vr(d, 4); crd = R('v', d, 4)
    return I(f"v_mfma_f32_16x16x32_bf16 {vr(d,4)}, {ar(a,4)}, {vr(b,4)}, {c}", 'mfma',
             rd=R('a', a, 4) | R('v', b, 4) | crd, wr=R('v', d, 4), crd=crd)

def mfma_pv(db, qb, u, pbuf):
    d = O_reg(qb, db); a = F_reg(2*db + u); b = P_reg(pbuf, qb, u)
    return I(f"v_mfma_f32_16x16x32_bf16 {ar(d,4)}, {ar(a,4)}, {vr(b,4)}, {ar(d,4)}", 'mfma',
             rd=R('a', a, 4) | R('v', b, 4) | R('a', d, 4), wr=R('a', d, 4), crd=R('a', d, 4))

def k_read(kb, s, slot, fidx=None):
    a = F_reg(8*kb + s if fidx is None else fidx)
    off = slot*TILE + (kb >> 1)*SUB + (kb & 1)*512 + s*64
    return I(f"ds_read_b128 {ar(a,4)}, {vr(V_KA)} offset:{off}", 'lds', rd=V(V_KA), wr=R('a', a, 4), frag=('K', kb, s))

def v_read(db, u, e, slot):
    a = F_reg(2*db + u) + 2*e
    off = slot*TILE + u*SUB + e*512 + db*32
    return I(f"ds_read_b64_tr_b16 {ar(a,2)}, {vr(V_VA)} offset:{off}", 'lds', rd=V(V_VA), wr=R('a', a, 2), frag=('V', db, u))

def valu(text, rd, wr): return I(text, 'valu', rd=rd, wr=wr)
def trans(text, rd, wr): return I(text, 'trans', rd=rd, wr=wr, cost=2)
def salu(text, rd=(), wr=()): return I(text, 'salu', rd=rd, wr=wr)
def nop(n): return I(f"s_nop {n}", 'nop')
def wait(text, **kw): return I("s_waitcnt " + text, 'wait', **kw)
def bar(): return I("s_barrier", 'barrier')

def dma(which, j, slot, nt=""):
    srd = S_K if which == 'K' else S_V
    so = S_KOFF if which == 'K' else S_VOFF
    mb = S_MK if which == 'K' else S_MV
    c = slot*TILE + (j >> 2)*4*PIECE + (j & 3)*32
    m = salu(f"s_add_u32 m0, s{mb}, {c}", wr={'m0', 'scc'})
    vo = V_D0 if j < 4 else V_D1
    d = I(f"buffer_load_dwordx4 {vr(vo)}, s[{srd}:{srd+3}], s{so} offen offset:{(j&3)*1024}{nt} lds", 'dma', rd={'m0', f"v{vo}"}, cost=2)
    return m, d

class Cfg:
    Y = 62; X = 168
    dmaV = [1, 6, 11, 16, 21, 26, 31, 36]
    dmaK = [66, 72, 78, 84, 90, 96, 102, 108]
    exp_first = 13
    exp_rate1 = 2.6
    exp_last = 180
    lat = 10
    wlat = 8
    nt = " nt"; ntq = " nt"; nto = " nt"
    stamps = False; dbg = False
    thr = 4096.0
    summode = "add"
    codepf = True
    pkmul = False
    win = 12
    win0 = 12

def sum_ops(cfg, qb, t, p, first):
    ts = TS(qb)
    cv0 = valu(f"v_cvt_pk_bf16_f32 {vr(p)}, {vr(t[0])}, {vr(t[1])}", V(t[0], t[1]), V(p))
    cv1 = valu(f"v_cvt_pk_bf16_f32 {vr(p+1)}, {vr(t[2])}, {vr(t[3])}", V(t[2], t[3]), V(p+1))
    o = []
    if cfg.summode == "add":
        if first: o.append((valu(f"v_add_f32 {vr(ts)}, {vr(t[0])}, {vr(t[1])}", V(t[0], t[1]), V(ts)), 1))
        else:
            o.append((valu(f"v_add_f32 {vr(ts)}, {vr(ts)}, {vr(t[0])}", V(t[0], ts), V(ts)), 0))
            o.append((valu(f"v_add_f32 {vr(ts)}, {vr(ts)}, {vr(t[1])}", V(t[1], ts), V(ts)), 1))
        o.append((cv0, 1))
        o.append((valu(f"v_add_f32 {vr(ts)}, {vr(ts)}, {vr(t[2])}", V(t[2], ts), V(ts)), 2))
        o.append((valu(f"v_add_f32 {vr(ts)}, {vr(ts)}, {vr(t[3])}", V(t[3], ts), V(ts)), 3))
        o.append((cv1, 3))
    elif cfg.summode == "pk":
        o.append((cv0, 1))
        if first:
            o.append((valu(f"v_pk_add_f32 {vr(ts,2)}, {vr(t[0],2)}, {vr(t[2],2)}", V(*t), V(ts, ts+1)), 3))
        else:
            o.append((valu(f"v_pk_add_f32 {vr(ts,2)}, {vr(ts,2)}, {vr(t[0],2)}", V(t[0], t[1], ts, ts+1), V(ts, ts+1)), 1))
            o.append((valu(f"v_pk_add_f32 {vr(ts,2)}, {vr(ts,2)}, {vr(t[2],2)}", V(t[2], t[3], ts, ts+1), V(ts, ts+1)), 3))
        o.append((cv1, 3))
    elif cfg.summode == "dot":
        o.append((cv0, 1))
        if first:
            o.append((I(f"v_dot2_f32_bf16 {vr(ts)}, {vr(p)}, s{S_T3}, 0", 'valu', V(p), V(ts), dot=True), 1))
        else:
            o.append((I(f"v_dot2_f32_bf16 {vr(ts)}, {vr(p)}, s{S_T3}, {vr(ts)}", 'valu', V(p, ts), V(ts), dot=True), 1))
        o.append((cv1, 3))
        o.append((I(f"v_dot2_f32_bf16 {vr(ts)}, {vr(p+1)}, s{S_T3}, {vr(ts)}", 'valu', V(p+1, ts), V(ts), dot=True), 3))
    return o

def lsum_ops(cfg):
    o = []
    for q in range(3):
        if cfg.summode == "pk":
            o.append(valu(f"v_pk_add_f32 {vr(LL(q),2)}, {vr(LL(q),2)}, {vr(TS(q),2)}", V(LL(q), LL(q)+1, TS(q), TS(q)+1), V(LL(q), LL(q)+1)))
        else:
            o.append(valu(f"v_add_f32 {vr(LL(q))}, {vr(LL(q))}, {vr(TS(q))}", V(LL(q), TS(q)), V(LL(q))))
    return o

def check_ops(cfg):
    o = [valu(f"v_max3_f32 {vr(V_CHK)}, {vr(TS(0))}, {vr(TS(1))}, {vr(TS(2))}", V(TS(0), TS(1), TS(2)), V(V_CHK))]
    if cfg.summode == "pk":
        o.append(valu(f"v_max3_f32 {vr(V_X)}, {vr(TS(0)+1)}, {vr(TS(1)+1)}, {vr(TS(2)+1)}", V(TS(0)+1, TS(1)+1, TS(2)+1), V(V_X)))
        o.append(valu(f"v_max_f32 {vr(V_CHK)}, {vr(V_CHK)}, {vr(V_X)}", V(V_CHK, V_X), V(V_CHK)))
    o.append(valu(f"v_cmp_nge_f32 vcc, s{S_THR}, {vr(V_CHK)}", V(V_CHK), {'vcc'}))
    return o

def softmax_ops(cfg, pbuf):
    exps = []; plains = []
    for kb in range(4):
        for qb in range(3):
            g = kb*3 + qb
            s = S_reg(kb, qb)
            t = [V_T + ((4*g + k) % NT) for k in range(4)]
            for k in range(4):
                e = trans(f"v_exp_f32 {vr(t[k])}, {vr(s+k)}", V(s+k), V(t[k]))
                e.ready = 8*g + 7; e.idx = 4*g + k
                exps.append(e)
            p = P_reg(pbuf, qb, kb >> 1) + 2*(kb & 1)
            for x, k in sum_ops(cfg, qb, t, p, kb == 0):
                x.after = 4*g + k; plains.append(x)
    return exps, plains

def build_iter(cfg, par, verbose=False):
    kslot = 1 - par; vslot = par; prd = par; pwr = 1 - par
    mf = []
    for kb in range(4):
        for qb in range(3):
            for s in range(8): mf.append(mfma_qk(kb, qb, s))
    for db in range(16):
        for qb in range(3):
            for u in range(2): mf.append(mfma_pv(db, qb, u, prd))
    NG = len(mf)
    lds = []
    for kb in (1, 2, 3):
        for s in range(8):
            r = k_read(kb, s, kslot); r.early = 0 if kb == 1 else 24*kb - 32 + s; r.use = 24*kb + s
            r.use = min(r.use, cfg.Y + 1)
            lds.append(r)
    for f in range(32):
        db, u = f >> 1, f & 1
        e0 = 64 + f if f < 8 else (88 + f - 8 if f < 16 else 96 + 6*(db - 8) + 4 + u)
        for e in range(2):
            r = v_read(db, u, e, vslot); r.early = max(e0, cfg.Y); r.use = min(96 + 6*db + u, cfg.X + 1); lds.append(r)
    for s in range(8):
        r = k_read(0, s, par); r.early = max(cfg.X, 148 + 6*(s >> 1) + (s & 1)); r.use = NG + s; r.nxt = True; lds.append(r)
    exps, plains = softmax_ops(cfg, pwr)
    n1 = min(48, int((96 - cfg.exp_first) / cfg.exp_rate1))
    for j, e in enumerate(exps):
        if j < n1: e.target = cfg.exp_first + j*cfg.exp_rate1
        else: e.target = 96 + (j - n1) * (cfg.exp_last - 96) / max(1, 48 - n1 - 1)
        e.target = max(e.target, e.ready + 6)
    head = lsum_ops(cfg)
    for h in head: h.after = -1
    tail = check_ops(cfg)
    for t in tail: t.after = 47
    plains = head + plains + tail
    dmas = {}
    flex = []
    prev = -1
    allg = sorted(cfg.dmaV + cfg.dmaK)
    for which, lst in (('V', cfg.dmaV), ('K', cfg.dmaK)):
        for j, g in enumerate(lst):
            if which == 'K': assert g > cfg.Y
            m, d = dma(which, j, 1 - par, cfg.nt); dmas[g] = d
            pg = max([x for x in allg if x < g], default=-1)
            flex.append((m, pg + 1, g - 1))
        so = S_KOFF if which == 'K' else S_VOFF
        flex.append((salu(f"s_add_u32 s{so}, s{so}, 32768", wr={'scc'}), lst[-1] + 1, lst[-1] + 20))
    if par == 0:
        flex.append((salu(f"s_sub_u32 s{S_CNT}, s{S_CNT}, 1", wr={'scc'}), 130, 160))
        flex.append((salu(f"s_cmp_eq_u32 s{S_CNT}, 0", wr={'scc'}), 175, 190))
    vec = {g: [] for g in range(NG)}
    li = ei = pi = 0
    exp_gap = {}
    last_dot = [-10]
    def temp_free(e):
        t = next(iter(e.wr))
        for k in range(pi, len(plains)):
            if t in plains[k].rd and plains[k].after < e.idx: return False
        return True
    def plain_ready(g):
        if pi >= len(plains): return False
        p = plains[pi]
        return p.after < 0 or (p.after in exp_gap and exp_gap[p.after] < g)
    for g in range(NG):
        if g in dmas:
            vec[g].append(dmas[g]); continue
        if g in (cfg.Y - 1, cfg.X - 1): continue
        cap = 2
        def lds_ok(k): return k < len(lds) and lds[k].early <= g
        def lds_slack(k):
            sl = 1e9
            for n, r in enumerate(lds[k:k+24]):
                sl = min(sl, r.use - cfg.lat - (g + n*1.4))
            return sl
        want_exp = ei < len(exps) and exps[ei].target <= g and temp_free(exps[ei])
        urgent = lds_ok(li) and lds_slack(li) <= 1
        if want_exp and not urgent:
            vec[g].append(exps[ei]); exp_gap[ei] = g; ei += 1; continue
        if lds_ok(li):
            vec[g].append(lds[li]); lds[li].gap = g; li += 1; cap -= 1
            if lds_ok(li) and (lds_slack(li) <= 0 or (not plain_ready(g) and lds_slack(li) <= 12)):
                vec[g].append(lds[li]); lds[li].gap = g; li += 1; cap -= 1
        while cap > 0 and plain_ready(g):
            p = plains[pi]
            if not getattr(p, 'dot', False) and g - last_dot[0] < 4 and any(f"v{TS(q)}" in p.rd for q in range(3)): break
            if getattr(p, 'dot', False): last_dot[0] = g
            vec[g].append(p); pi += 1; cap -= 1
    assert li == len(lds), (li, len(lds))
    assert ei == len(exps) and pi == len(plains), (ei, pi, len(plains))
    scal = {g: [] for g in range(NG)}
    scal[cfg.Y - 1] += [wait("vmcnt(16) lgkmcnt(0)", lg=0), bar()]
    scal[cfg.X - 1] += [wait("vmcnt(16) lgkmcnt(0)", lg=0), bar()]
    for r in lds:
        if r.frag[0] == 'K' and not getattr(r, 'nxt', False): assert r.gap < cfg.Y - 1 - 4, (r, r.gap)
        if r.frag[0] == 'V': assert cfg.Y - 1 <= r.gap < cfg.X - 1 - 4, (r, r.gap)
        if getattr(r, 'nxt', False): assert r.gap >= cfg.X - 1
    return mf, scal, vec, flex, verbose

def flatten(cfg, mf, scal, vec, flex, verbose, pending):
    NG = len(mf)
    pend = list(pending)
    pre = []
    for g in range(-1, NG):
        if g >= 0:
            for x in scal[g]:
                if x.kind == 'wait' and getattr(x, 'lg', None) == 0: pend = []
        if g + 1 < NG:
            m = mf[g+1]
            last = -1
            for k, r in enumerate(pend):
                if r.wr & m.rd: last = k
            if last >= 0:
                for k, r in enumerate(pend):
                    if k > last and r.gap <= g - cfg.wlat: last = k
                n = min(len(pend) - 1 - last, 15)
                w = wait(f"lgkmcnt({n})")
                (pre if g < 0 else scal[g]).append(w)
                pend = pend[len(pend) - n:] if n > 0 else []
            if g >= 0:
                for x in vec[g]:
                    if x.kind == 'lds': assert not (x.wr & m.rd), ("read too late", x, m)
        if g >= 0:
            for x in vec[g]:
                if x.kind == 'lds': pend.append(x)
    for x, a, b in flex:
        def load(g): return 4*max(0, len(scal[g])) + (0 if len(scal[g]) == 0 else 4*sum(v.cost for v in vec[g]))
        best = min(range(b, a - 1, -1), key=load)
        scal[best].append(x)
    if verbose:
        code = {'lds': 'd', 'valu': 'a', 'trans': 'E', 'dma': 'M'}
        s = ""
        for g in range(NG):
            s += (str(len(scal[g])) if scal[g] else " ") + "".join(code[x.kind] for x in vec[g]).ljust(2, '.') + " "
            if g % 24 == 23: s += "\n"
        sys.stderr.write(s + "\n")
    out = list(pre)
    for g in range(NG):
        out.append(mf[g]); out += scal[g]; out += vec[g]
    for r in pend: r.gap -= NG
    return out, pend

def need_wait(out, pend, m):
    last = -1
    for k, r in enumerate(pend):
        if r.wr & (m.rd | m.wr): last = k
    if last >= 0:
        n = min(len(pend) - 1 - last, 15)
        out.append(wait(f"lgkmcnt({n})"))
        pend = pend[len(pend) - n:] if n > 0 else []
    return pend

def states(x):
    if x.text.startswith("s_nop"): return int(x.text.split()[1]) + 1
    return 1

def hazard_need(p, c):
    need = 0
    if p.kind == 'mfma':
        if c.kind in ('valu', 'trans', 'vmem', 'lds', 'dma') and (p.wr & (c.rd | c.wr)): need = 8
        if c.kind == 'mfma':
            ab = c.rd - c.crd
            if p.wr & ab: need = 8
            if (p.wr & c.crd) and p.wr != c.crd: need = 6
        if c.kind in ('valu', 'trans') and (p.crd & c.wr): need = max(need, 3)
    if p.kind in ('valu', 'trans'):
        if c.kind == 'mfma' and (p.wr & c.rd): need = 2
        if p.kind == 'trans' and c.kind == 'valu' and (p.wr & c.rd): need = 1
        if c.text.startswith("v_permlane") and (p.wr & c.rd): need = 2
        if c.text.startswith("v_readfirstlane") and (p.wr & c.rd): need = 1
        if getattr(p, 'dot', False) and not getattr(c, 'dot', False) and (p.wr & (c.rd | c.wr)): need = 3
        sw = {w for w in p.wr if w.startswith('s') or w == 'vcc'}
        if sw and c.kind in ('valu', 'trans') and (sw & c.rd): need = max(need, 2)
        if sw and c.kind in ('vmem', 'dma') and (sw & c.rd): need = max(need, 5)
    if p.kind == 'salu' and 'm0' in p.wr and c.kind == 'dma': need = 1
    if p.kind == 'vmem' and getattr(p, 'store', False) and (p.data & c.wr): need = 2
    return need

def check_hazards(seq, label):
    n = len(seq)
    for i, p in enumerate(seq):
        dist = 0
        for j in range(i+1, min(n, i+24)):
            c = seq[j]
            need = hazard_need(p, c)
            if dist < need:
                raise Exception(f"hazard in {label}: '{p.text}' -> '{c.text}' dist {dist} need {need}")
            dist += states(c)

def pad_hazards(seq):
    out = []
    for c in seq:
        dist = 0; short = 0
        for p in reversed(out[-24:]):
            short = max(short, hazard_need(p, c) - dist)
            dist += states(p)
        if short > 0: out.append(nop(short - 1))
        out.append(c)
    return out

def xlane_reduce(op, x, ta, tb):
    o = []
    for sw in ("v_permlane16_swap_b32", "v_permlane32_swap_b32"):
        o.append(valu(f"v_mov_b32 {vr(ta)}, {vr(x)}", V(x), V(ta)))
        o.append(valu(f"{sw} {vr(ta)}, {vr(x)}", V(ta, x), V(ta, x)))
        o.append(nop(1))
        o.append(valu(f"{op} {vr(x)}, {vr(ta)}, {vr(x)}", V(ta, x), V(x)))
    return o

def fix_max_qb(cfg, qb, pwr, first):
    o = []
    dl = V_E + 0; ta = V_E + 1; tb = V_E + 2; f = V_E + 3
    regs = [S_reg(kb, qb) + r for kb in range(4) for r in range(4)]
    o.append(valu(f"v_max3_f32 {vr(dl)}, {vr(regs[0])}, {vr(regs[1])}, {vr(regs[2])}", V(*regs[:3]), V(dl)))
    for k in range(3, 15, 2):
        o.append(valu(f"v_max3_f32 {vr(dl)}, {vr(dl)}, {vr(regs[k])}, {vr(regs[k+1])}", V(dl, regs[k], regs[k+1]), V(dl)))
    o.append(valu(f"v_max_f32 {vr(dl)}, {vr(dl)}, {vr(regs[15])}", V(dl, regs[15]), V(dl)))
    o += xlane_reduce("v_max_f32", dl, ta, tb)
    if not first:
        o.append(valu(f"v_max_f32 {vr(dl)}, 0, {vr(dl)}", V(dl), V(dl)))
    else:
        o.append(valu(f"v_max_f32 {vr(dl)}, 0xff7fffff, {vr(dl)}", V(dl), V(dl)))
    for r in range(4):
        c = V_CI + 4*qb + r
        if first: o.append(valu(f"v_sub_f32 {vr(c)}, 0, {vr(dl)}", V(dl), V(c)))
        else: o.append(valu(f"v_sub_f32 {vr(c)}, {vr(c)}, {vr(dl)}", V(dl, c), V(c)))
    if not first:
        o.append(trans(f"v_exp_f32 {vr(f)}, -{vr(dl)}", V(dl), V(f)))
        for r in range(2 if cfg.summode == "pk" else 1):
            o.append(valu(f"v_mul_f32 {vr(LL(qb)+r)}, {vr(LL(qb)+r)}, {vr(f)}", V(f, LL(qb)+r), V(LL(qb)+r)))
        for k in range(0, 64, 4):
            a = O_reg(qb, 0) + k
            for r in range(4): o.append(valu(f"v_accvgpr_read_b32 {vr(V_T+r)}, {ar(a+r)}", {f"a{a+r}"}, V(V_T+r)))
            for r in range(4): o.append(valu(f"v_mul_f32 {vr(V_T+r)}, {vr(V_T+r)}, {vr(f)}", V(V_T+r, f), V(V_T+r)))
            for r in range(4): o.append(valu(f"v_accvgpr_write_b32 {ar(a+r)}, {vr(V_T+r)}", V(V_T+r), {f"a{a+r}"}))
    for kb in range(4):
        s = S_reg(kb, qb); t = [V_T + 4*(kb & 1) + r for r in range(4)]
        for r in range(4): o.append(valu(f"v_sub_f32 {vr(t[r])}, {vr(s+r)}, {vr(dl)}", V(s+r, dl), V(t[r])))
        for r in range(4): o.append(trans(f"v_exp_f32 {vr(t[r])}, {vr(t[r])}", V(t[r]), V(t[r])))
        p = P_reg(pwr, qb, kb >> 1) + 2*(kb & 1)
        o += [x for x, k in sum_ops(cfg, qb, t, p, kb == 0)]
    return o

def rare(cfg, pwr):
    o = [nop(15), nop(7)]
    for qb in range(3): o += fix_max_qb(cfg, qb, pwr, False)
    o.append(nop(3))
    return pad_hazards(o)

def stamp(cfg, k):
    if not cfg.stamps: return []
    return [I(f"s_memtime s[{S_TM+2*k}:{S_TM+2*k+1}]", 'smem')]

def prologue(cfg):
    o = []
    A = o.append
    A(salu("s_cmp_ge_u32 s2, 256"))
    A(I("s_cbranch_scc1 L_end", 'branch'))
    if cfg.stamps:
        A(I(f"s_memrealtime s[{S_TM+24}:{S_TM+25}]", 'smem'))
    o += stamp(cfg, 0)
    A(I("s_load_dwordx4 s[4:7], s[0:1], 0", 'smem'))
    A(I("s_load_dwordx4 s[8:11], s[0:1], 16", 'smem'))
    if cfg.stamps:
        A(I(f"s_load_dwordx2 s[{S_DBG}:{S_DBG+1}], s[0:1], {32 if cfg.dbg else 40}", 'smem'))
    nvm = 0
    if cfg.codepf:
        A(I(f"s_getpc_b64 s[{S_PC}:{S_PC+1}]", 'salu'))
        A(I("L_pc:", 'label'))
        A(valu(f"v_lshlrev_b32 {vr(V_X)}, 7, v0", V(0), V(V_X)))
        A(valu(f"v_min_u32 {vr(V_X)}, L_code_end-L_pc-4, {vr(V_X)}", V(V_X), V(V_X)))
        A(I(f"global_load_dword {vr(V_PF)}, {vr(V_X)}, s[{S_PC}:{S_PC+1}]", 'vmem', rd=V(V_X), wr=V(V_PF)))
    A(valu(f"v_lshrrev_b32 {vr(V_Z)}, 6, v0", V(0), V(V_Z)))
    A(valu(f"v_and_b32 {vr(V_Y)}, 63, v0", V(0), V(V_Y)))
    A(valu(f"v_readfirstlane_b32 s{S_W}, {vr(V_Z)}", V(V_Z), {f"s{S_W}"}))
    A(salu(f"s_and_b32 s{S_T0}, s2, 7"))
    A(salu(f"s_lshl_b32 s{S_T0}, s{S_T0}, 4"))
    A(salu(f"s_lshr_b32 s{S_T1}, s2, 4"))
    A(salu(f"s_add_u32 s{S_T0}, s{S_T0}, s{S_T1}"))
    A(salu(f"s_bfe_u32 s{S_T1}, s2, 0x10003"))
    A(salu(f"s_lshl1_add_u32 s{S_T2}, s{S_T0}, s{S_T1}"))
    A(salu(f"s_lshl2_add_u32 s{S_T2}, s{S_T2}, s{S_W}"))
    A(salu(f"s_mul_i32 s{S_T2}, s{S_T2}, 24576"))
    A(salu(f"s_lshl_b32 s{S_T0}, s{S_T0}, 20"))
    A(valu(f"v_and_b32 {vr(V_X)}, 15, v0", V(0), V(V_X)))
    A(valu(f"v_and_b32 {vr(V_CHK)}, 48, v0", V(0), V(V_CHK)))
    A(valu(f"v_lshl_add_u32 {vr(V_QO)}, {vr(V_X)}, 9, {vr(V_CHK)}", V(V_X, V_CHK), V(V_QO)))
    A(valu(f"v_lshlrev_b32 {vr(V_D0)}, 4, {vr(V_Y)}", V(V_Y), V(V_D0)))
    A(valu(f"v_lshl_add_u32 {vr(V_D0)}, {vr(V_Z)}, 13, {vr(V_D0)}", V(V_Z, V_D0), V(V_D0)))
    A(valu(f"v_add_u32 {vr(V_D1)}, 4096, {vr(V_D0)}", V(V_D0), V(V_D1)))
    A(salu(f"s_mul_i32 s{S_MK}, s{S_W}, {8*PIECE}"))
    A(salu(f"s_mov_b32 s{S_KOFF}, 0"))
    A(salu(f"s_movk_i32 s{S_8K}, 8192"))
    A(salu(f"s_movk_i32 s{S_16K}, 16384"))
    A(salu(f"s_movk_i32 s{S_Q+2}, 24576")); A(salu(f"s_mov_b32 s{S_Q+3}, 0x20000"))
    A(wait("lgkmcnt(0)"))
    A(salu(f"s_add_u32 s{S_Q}, s4, s{S_T2}")); A(salu(f"s_addc_u32 s{S_Q+1}, s5, 0"))
    A(salu(f"s_add_u32 s{S_K}, s6, s{S_T0}")); A(salu(f"s_addc_u32 s{S_K+1}, s7, 0"))
    A(salu(f"s_mov_b32 s{S_K+2}, {1 << 20}")); A(salu(f"s_mov_b32 s{S_K+3}, 0x20000"))
    o += stamp(cfg, 1)
    loads = []
    def qload(qb, s):
        so = "0" if qb == 0 else (f"s{S_8K}" if qb == 1 else f"s{S_16K}")
        q = Q_reg(qb, s)
        return [I(f"buffer_load_dwordx4 {vr(q,4)}, {vr(V_QO)}, s[{S_Q}:{S_Q+3}], {so} offen offset:{s*64}{cfg.ntq}", 'vmem', rd=V(V_QO), wr=R('v', q, 4))]
    def dload(which, j, slot):
        m, d = dma(which, j, slot, cfg.nt)
        r = [m, d]
        if j == 7:
            so = S_KOFF if which == 'K' else S_VOFF
            r.append(salu(f"s_add_u32 s{so}, s{so}, 32768"))
        return r
    loads += [dload('K', j, 0) for j in range(8)]
    loads += [qload(0, s) for s in range(8)]
    loads += [qload(1, s) for s in range(8)]
    loads += [qload(2, s) for s in range(8)]
    loads += [dload('K', j, 1) for j in range(8)]
    loads += [dload('V', j, 0) for j in range(8)]
    st = {'issued': 0}
    def issue(n=1):
        for _ in range(n):
            if st['issued'] < len(loads):
                o.extend(loads[st['issued']]); st['issued'] += 1
    def issue_to(n):
        while st['issued'] < min(n, len(loads)): issue()
    def wait_load(j):
        assert st['issued'] > j
        A(wait(f"vmcnt({st['issued'] - 1 - j})"))
    issue(cfg.win0)
    A(salu(f"s_add_u32 s{S_O}, s10, s{S_T2}")); A(salu(f"s_addc_u32 s{S_O+1}, s11, 0"))
    A(salu(f"s_add_u32 s{S_V}, s8, s{S_T0}")); A(salu(f"s_addc_u32 s{S_V+1}, s9, 0"))
    for b, sz in ((S_V, 1 << 20), (S_O, 24576)):
        A(salu(f"s_mov_b32 s{b+2}, {sz}")); A(salu(f"s_mov_b32 s{b+3}, 0x20000"))
    if cfg.stamps:
        A(salu(f"s_mov_b32 s{S_DBG+2}, {64 if cfg.dbg else 0x100000}")); A(salu(f"s_mov_b32 s{S_DBG+3}, 0x20000"))
    A(valu(f"v_mul_u32_u24 {vr(V_KA)}, {PIECE}, {vr(V_X)}", V(V_X), V(V_KA)))
    A(valu(f"v_add_u32 {vr(V_KA)}, {vr(V_KA)}, {vr(V_CHK)}", V(V_KA, V_CHK), V(V_KA)))
    A(salu(f"s_mul_i32 s{S_T1}, s{S_W}, {SUB}"))
    A(valu(f"v_mul_u32_u24 {vr(V_EW)}, {EROW}, {vr(V_X)}", V(V_X), V(V_EW)))
    A(valu(f"v_lshrrev_b32 {vr(V_CHK)}, 1, {vr(V_CHK)}", V(V_CHK), V(V_CHK)))
    A(valu(f"v_add3_u32 {vr(V_EW)}, {vr(V_EW)}, {vr(V_CHK)}, s{S_T1}", V(V_EW, V_CHK), V(V_EW)))
    A(valu(f"v_lshrrev_b32 {vr(V_X)}, 3, {vr(V_Y)}", V(V_Y), V(V_X)))
    A(valu(f"v_mul_u32_u24 {vr(V_ER)}, {EROW}, {vr(V_X)}", V(V_X), V(V_ER)))
    A(valu(f"v_and_b32 {vr(V_CHK)}, 7, {vr(V_Y)}", V(V_Y), V(V_CHK)))
    A(valu(f"v_lshlrev_b32 {vr(V_CHK)}, 4, {vr(V_CHK)}", V(V_CHK), V(V_CHK)))
    A(valu(f"v_add3_u32 {vr(V_ER)}, {vr(V_ER)}, {vr(V_CHK)}, s{S_T1}", V(V_ER, V_CHK), V(V_ER)))
    A(valu(f"v_lshl_add_u32 {vr(V_Z)}, {vr(V_X)}, 9, {vr(V_CHK)}", V(V_X, V_CHK), V(V_Z)))
    A(valu(f"v_lshrrev_b32 {vr(V_X)}, 2, {vr(V_Y)}", V(V_Y), V(V_X)))
    A(valu(f"v_mul_u32_u24 {vr(V_VA)}, {PIECE}, {vr(V_X)}", V(V_X), V(V_VA)))
    A(valu(f"v_and_b32 {vr(V_X)}, 3, {vr(V_Y)}", V(V_Y), V(V_X)))
    A(valu(f"v_lshl_add_u32 {vr(V_VA)}, {vr(V_X)}, 3, {vr(V_VA)}", V(V_X, V_VA), V(V_VA)))
    A(valu(f"v_add_u32 {vr(V_VA)}, {VBASE}, {vr(V_VA)}", V(V_VA), V(V_VA)))
    A(valu(f"v_add_u32 {vr(V_Y)}, 4096, {vr(V_Z)}", V(V_Z), V(V_Y)))
    A(salu(f"s_add_u32 s{S_MV}, s{S_MK}, {VBASE}"))
    A(salu(f"s_mov_b32 s{S_VOFF}, 0"))
    A(salu(f"s_mov_b32 s{S_C}, 0x{f2u(math.log2(math.e)/16):08x}"))
    A(salu(f"s_mov_b32 s{S_THR}, 0x{f2u(cfg.thr):08x}"))
    A(salu(f"s_mov_b32 s{S_T3}, 0x3f803f80"))
    A(salu(f"s_mov_b32 s{S_CNT}, 16"))
    for k in range(192): A(valu(f"v_accvgpr_write_b32 a{k}, 0", (), {f"a{k}"}))
    for q in range(6): A(valu(f"v_mov_b32 {vr(V_L+q)}, 0", (), V(V_L+q)))
    A(valu(f"v_mov_b32 {vr(V_PF+2)}, s{S_C}", (), V(V_PF+2)))
    A(valu(f"v_mov_b32 {vr(V_PF+3)}, s{S_C}", (), V(V_PF+3)))
    def prescale(qb, s):
        q = Q_reg(qb, s)
        for r in range(4):
            A(valu(f"v_lshlrev_b32 {vr(V_T+2*r)}, 16, {vr(q+r)}", V(q+r), V(V_T+2*r)))
            A(valu(f"v_and_b32 {vr(V_T+2*r+1)}, 0xffff0000, {vr(q+r)}", V(q+r), V(V_T+2*r+1)))
        for r in range(0, 8, 2):
            A(valu(f"v_pk_mul_f32 {vr(V_T+r,2)}, {vr(V_T+r,2)}, {vr(V_PF+2,2)}", V(V_T+r, V_T+r+1, V_PF+2, V_PF+3), V(V_T+r, V_T+r+1)))
        for r in range(4):
            A(valu(f"v_cvt_pk_bf16_f32 {vr(q+r)}, {vr(V_T+2*r)}, {vr(V_T+2*r+1)}", V(V_T+2*r, V_T+2*r+1), V(q+r)))
    for j in range(8):
        wait_load(j); issue_to(j + 1 + cfg.win)
    A(bar())
    o += stamp(cfg, 2)
    steps = [(qb, s) for qb in range(3) for s in range(8)]
    pend = []
    def kreads(t):
        nonlocal pend
        if t < len(steps):
            for kb in range(4):
                r = k_read(kb, steps[t][1], 0, fidx=4*t + kb); A(r); pend.append(r)
    for t in range(3): kreads(t)
    for t, (qb, s) in enumerate(steps):
        wait_load(8 + t)
        prescale(qb, s)
        for kb in range(4):
            m = mfma_qk(kb, qb, s, czero=True, fidx=4*t + kb)
            pend = need_wait(o, pend, m)
            A(m)
        kreads(t + 3)
        issue_to(8 + t + 1 + cfg.win)
        if s == 7:
            fm = fix_max_qb(cfg, qb, 0, True)
            h = len(fm) // 2
            o += fm[:h]; issue(); o += fm[h:]
            o += stamp(cfg, 3 + qb)
    issue(48)
    A(wait("lgkmcnt(0)"))
    A(bar())
    for j in range(8): o += dload('K', j, 0)
    A(wait("vmcnt(16)"))
    A(bar())
    pend = []
    for s in range(8):
        r = k_read(0, s, 1); r.gap = -100; A(r); pend.append(r)
    o += stamp(cfg, 6)
    return pad_hazards(o), pend

def final(cfg):
    o = []
    A = o.append
    par = 1
    A(wait("vmcnt(0) lgkmcnt(0)"))
    A(bar())
    pend = []
    reads = [v_read(f >> 1, f & 1, e, par) for f in range(32) for e in range(2)]
    ri = 0
    for k in range(14):
        A(reads[ri]); pend.append(reads[ri]); ri += 1
    o += lsum_ops(cfg)
    for q in range(3):
        if cfg.summode == "pk":
            A(valu(f"v_add_f32 {vr(LL(q))}, {vr(LL(q))}, {vr(LL(q)+1)}", V(LL(q), LL(q)+1), V(LL(q))))
        o += xlane_reduce("v_add_f32", LL(q), V_E+1, V_E+2)
    for q in range(3):
        A(trans(f"v_rcp_f32 {vr(LL(q))}, {vr(LL(q))}", V(LL(q)), V(LL(q))))
    for q in range(3):
        A(valu(f"v_mov_b32 {vr(LL(q)+1)}, {vr(LL(q))}", V(LL(q)), V(LL(q)+1)))
    work = []
    n = 0
    free_p = 0
    for db in range(16):
        grp = db >> 2
        for qb in range(3):
            t = V_S + 4*(n % 8); d = V_S + 32 + 2*(n % 8)
            a = O_reg(qb, db)
            w = []
            for r in range(4): w.append(valu(f"v_accvgpr_read_b32 {vr(t+r)}, {ar(a+r)}", {f"a{a+r}"}, V(t+r)))
            if cfg.pkmul:
                for r in (0, 2): w.append(valu(f"v_pk_mul_f32 {vr(t+r,2)}, {vr(t+r,2)}, {vr(LL(qb),2)}", V(t+r, t+r+1, LL(qb), LL(qb)+1), V(t+r, t+r+1)))
            else:
                for r in range(4): w.append(valu(f"v_mul_f32 {vr(t+r)}, {vr(t+r)}, {vr(LL(qb))}", V(t+r, LL(qb)), V(t+r)))
            for r in range(2): w.append(valu(f"v_cvt_pk_bf16_f32 {vr(d+r)}, {vr(t+2*r)}, {vr(t+2*r+1)}", V(t+2*r, t+2*r+1), V(d+r)))
            off = ((grp & 1)*3 + qb)*EBLK + (db & 3)*32
            w.append(I(f"ds_write_b64 {vr(V_EW)}, {vr(d,2)} offset:{off}", 'lds', rd=V(V_EW, d, d+1), wr={f"E{grp}_{qb}"}, dsw=True))
            work.append((6*db + 2*qb + 1, w))
            n += 1
        if (db & 3) == 3:
            w = []
            for qb in range(3):
                for h in range(2):
                    d = V_P + 4*(qb*2 + h)
                    off = ((grp & 1)*3 + qb)*EBLK + h*8*EROW
                    w.append(I(f"ds_read_b128 {vr(d,4)}, {vr(V_ER)} offset:{off}", 'lds', rd=V(V_ER), wr=R('v', d, 4)))
            work.append((6*db + 5, w))
            w = []
            for qb in range(3):
                for h in range(2):
                    d = V_P + 4*(qb*2 + h)
                    so = "0" if qb == 0 else (f"s{S_8K}" if qb == 1 else f"s{S_16K}")
                    va = V_Z if h == 0 else V_Y
                    w.append(I(f"buffer_store_dwordx4 {vr(d,4)}, {vr(va)}, s[{S_O}:{S_O+3}], {so} offen offset:{128*grp}{cfg.nto}", 'vmem',
                               rd=R('v', d, 4) | V(va), store=True, data=R('v', d, 4)))
            work.append(('store', w))
    items = []
    delayed = None; cnt = 0
    for m, w in work:
        if m == 'store': delayed = w; cnt = 0; continue
        items.append((m, w))
        if delayed is not None:
            cnt += 1
            if cnt == 2: items.append((m, delayed)); delayed = None
    if delayed is not None: items.append((95, delayed))
    flat = [(m, x) for m, w in items for x in w]
    wi = 0
    def emit_work(x):
        nonlocal pend
        if x.kind == 'vmem' or (x.kind == 'valu'):
            pend = need_wait(o, pend, x)
        if x.kind == 'lds' and not getattr(x, 'dsw', False):
            pass
        if x.kind == 'lds' and len(pend) >= 15:
            A(wait("lgkmcnt(10)")); pend = pend[-10:]
        A(x)
        if x.kind == 'lds': pend.append(x)
    g = 0
    per = cfg.__dict__.get('fin_per', 5)
    for db in range(16):
        for qb in range(3):
            for u in range(2):
                m = mfma_pv(db, qb, u, par)
                pend = need_wait(o, pend, m)
                A(m)
                if ri < 64:
                    f = ri >> 1
                    ok = f < 16 or g >= 6*((f - 16) >> 1) + 4 + (f & 1)
                    if ok:
                        if len(pend) >= 15:
                            A(wait("lgkmcnt(10)")); pend = pend[-10:]
                        A(reads[ri]); pend.append(reads[ri]); ri += 1
                k = 0
                while wi < len(flat) and k < per and flat[wi][0] + 2 <= g:
                    emit_work(flat[wi][1]); wi += 1; k += 1
                g += 1
    assert ri == 64
    while wi < len(flat):
        emit_work(flat[wi][1]); wi += 1
    return pad_hazards(o)

def dump_stamps(cfg, nst):
    if not cfg.stamps: return []
    o = []
    A = o.append
    A(wait("vmcnt(0)"))
    A(I(f"s_memtime s[{S_TM+2*nst}:{S_TM+2*nst+1}]", 'smem'))
    A(I(f"s_memrealtime s[{S_TM+26}:{S_TM+27}]", 'smem'))
    A(I(f"s_getreg_b32 s{S_T3}, hwreg(HW_REG_XCC_ID)", 'salu'))
    A(wait("lgkmcnt(0)"))
    A(salu(f"s_lshl_b32 s{S_T1}, s2, 2"))
    A(salu(f"s_add_u32 s{S_T1}, s{S_T1}, s{S_W}"))
    A(salu(f"s_lshl_b32 s{S_T1}, s{S_T1}, 6"))
    A(valu(f"v_mov_b32 {vr(V_X)}, s{S_T1}", (), V(V_X)))
    for k in range(1, 12):
        A(salu(f"s_sub_u32 s{S_T0}, s{S_TM+2*k}, s{S_TM}"))
        A(valu(f"v_mov_b32 {vr(V_S+k)}, s{S_T0}", (), V(V_S+k)))
    A(valu(f"v_mov_b32 {vr(V_S+12)}, s{S_TM+24}", (), V(V_S+12)))
    A(valu(f"v_mov_b32 {vr(V_S+13)}, s{S_TM+26}", (), V(V_S+13)))
    A(valu(f"v_mov_b32 {vr(V_S+14)}, s{S_T3}", (), V(V_S+14)))
    A(valu(f"v_mov_b32 {vr(V_S)}, {vr(V_S+nst)}", (), V(V_S)))
    for k in range(4):
        A(I(f"buffer_store_dwordx4 {vr(V_S+4*k,4)}, {vr(V_X)}, s[{S_DBG}:{S_DBG+3}], 0 offen offset:{16*k}", 'vmem'))
    return o

def emit(cfg, path, verbose=False):
    lines = []
    def put(seq):
        for x in seq: lines.append(x.text if x.kind == 'label' else "    " + x.text)
    pro, pend0 = prologue(cfg)
    _, p1 = flatten(cfg, *build_iter(cfg, 1), pend0)
    assert len(p1) == 8
    it0, pend1 = flatten(cfg, *build_iter(cfg, 0, verbose=verbose), p1)
    it1, pend2 = flatten(cfg, *build_iter(cfg, 1), pend1)
    assert [p.wr for p in pend2] == [p.wr for p in pend0] == [p.wr for p in pend1]
    fin = final(cfg)
    rare0 = rare(cfg, 1)
    rare1 = rare(cfg, 0)
    br = lambda t: I(t, 'branch')
    check_hazards(pro + it0 + [br("x"), br("x")] + it1 + [br("x"), br("x")] + it0, "main")
    check_hazards(it0 + [br("x"), br("x")] + fin, "tail")
    check_hazards(it0[-40:] + [br("x")] + rare0 + [br("x")] + it1[:40], "rare0")
    check_hazards(it0[-40:] + [br("x")] + rare0 + [br("x")] + fin[:40], "rare0f")
    check_hazards(it1[-40:] + [br("x")] + rare1 + [br("x")] + it0[:40], "rare1")
    put(pro)
    lines.append(".p2align 6")
    lines.append("L_loop:")
    put(it0)
    lines.append("    s_cbranch_vccnz L_rare0")
    lines.append("L_j0:")
    lines.append("    s_cbranch_scc1 L_final")
    put(it1)
    lines.append("    s_cbranch_vccz L_loop")
    put(rare1); lines.append("    s_branch L_loop")
    lines.append("L_final:")
    put(stamp(cfg, 7))
    put(fin)
    put(stamp(cfg, 8))
    put(dump_stamps(cfg, 9))
    lines.append("L_end:")
    lines.append("    s_endpgm")
    lines.append("L_code_end:")
    lines.append("L_rare0:")
    put(rare0); lines.append("    s_branch L_j0")
    text = "\n".join(lines)
    hdr = open("cdna_kernels/" + NAME + ".s.ref").read().split("; Override launch geometry")[0]
    out = hdr + f"; @launch grid=(256,1,1) block=(256,1,1) lds={LDS_BYTES}\n"
    out += f""".amdgcn_target "amdgcn-amd-amdhsa--gfx950"
.text
.globl {NAME}_kernel
.p2align 8
.type {NAME}_kernel,@function
{NAME}_kernel:
{text}
.section .rodata,"a"
.p2align 6
.amdhsa_kernel {NAME}_kernel
  .amdhsa_next_free_vgpr 512
  .amdhsa_next_free_sgpr 96
  .amdhsa_accum_offset 256
  .amdhsa_group_segment_fixed_size 0
  .amdhsa_kernarg_size 48
  .amdhsa_user_sgpr_count 2
  .amdhsa_user_sgpr_kernarg_segment_ptr 1
  .amdhsa_system_sgpr_workgroup_id_x 1
.end_amdhsa_kernel
"""
    open(path, "w").write(out)

if __name__ == "__main__":
    ap = argparse.ArgumentParser()
    ap.add_argument("-o", default="cdna_kernels/" + NAME + ".s")
    ap.add_argument("--stamps", action="store_true")
    ap.add_argument("--set", action="append", default=[])
    ap.add_argument("-v", action="store_true")
    a = ap.parse_args()
    cfg = Cfg()
    cfg.stamps = a.stamps
    for kv in a.set:
        k, v = kv.split("=", 1)
        setattr(cfg, k, eval(v))
    emit(cfg, a.o, a.v)
```

```python
import sys, os

HDR = """.amdgcn_target "amdgcn-amd-amdhsa--gfx950"
.text
.globl mb_kernel
.p2align 8
.type mb_kernel,@function
mb_kernel:
    s_load_dwordx2 s[4:5], s[0:1], 0
    s_load_dwordx2 s[6:7], s[0:1], 8
    s_waitcnt lgkmcnt(0)
    s_mov_b32 s8, s4
    s_mov_b32 s9, s5
    s_mov_b32 s10, 0x10000000
    s_mov_b32 s11, 0x00020000
    s_mov_b32 s12, s6
    s_mov_b32 s13, s7
    s_mov_b32 s14, 0x100000
    s_mov_b32 s15, 0x00020000
    v_lshlrev_b32 v1, 4, v0          ; lane*16 (0..4095)
    v_and_b32 v2, 63, v0
    v_lshlrev_b32 v2, 4, v2
    v_lshlrev_b32 v3, 3, v0
    v_and_b32 v3, 511, v3
    v_lshrrev_b32 v4, 6, v0
    s_nop 1
    v_readfirstlane_b32 s20, v4
    s_lshl_b32 s21, s2, 20
    s_lshl_b32 s22, s20, 14
    s_mov_b32 m0, s22
    s_mov_b32 s23, 0x3c00
{init}
    s_mov_b32 s16, {nit}
    s_barrier
    s_memtime s[24:25]
    s_memrealtime s[28:29]
    s_waitcnt lgkmcnt(0)
    s_nop 0
.p2align 6
L_loop:
{body}
    s_sub_u32 s16, s16, 1
    s_cmp_lg_u32 s16, 0
    s_cbranch_scc1 L_loop
    s_waitcnt vmcnt(0) lgkmcnt(0)
    s_memtime s[26:27]
    s_memrealtime s[30:31]
    s_waitcnt lgkmcnt(0)
    s_sub_u32 s26, s26, s24
    s_sub_u32 s30, s30, s28
    v_mov_b32 v10, s26
    v_mov_b32 v11, s30
    s_lshl_b32 s3, s2, 8
    v_add_u32 v12, s3, v0
    v_lshlrev_b32 v12, 3, v12
    buffer_store_dwordx2 v[10:11], v12, s[12:15], 0 offen
    s_waitcnt vmcnt(0)
    s_endpgm
.section .rodata,"a"
.p2align 6
.amdhsa_kernel mb_kernel
  .amdhsa_next_free_vgpr {nvgpr}
  .amdhsa_next_free_sgpr 96
  .amdhsa_accum_offset 256
  .amdhsa_group_segment_fixed_size 0
  .amdhsa_kernarg_size 16
  .amdhsa_user_sgpr_count 2
  .amdhsa_user_sgpr_kernarg_segment_ptr 1
  .amdhsa_system_sgpr_workgroup_id_x 1
.end_amdhsa_kernel
.amdgpu_metadata
---
amdhsa.version: [1, 2]
amdhsa.kernels:
  - .name: mb_kernel
    .symbol: mb_kernel.kd
    .kernarg_segment_size: 16
    .kernarg_segment_align: 8
    .group_segment_fixed_size: 0
    .private_segment_fixed_size: 0
    .wavefront_size: 64
    .sgpr_count: 96
    .vgpr_count: {nvgpr}
    .max_flat_workgroup_size: 512
    .args:
      - {{.name: kernargs, .size: 16, .offset: 0, .value_kind: by_value}}
...
.end_amdgpu_metadata
"""

def init_regs():
    s = []
    for i in range(16, 256):
        s.append(f"    v_mov_b32 v{i}, 0x{(0x3f803f80 ^ ((i*2654435761) & 0x807f807f)) & 0xffffffff:08x}")
    for i in range(256):
        s.append(f"    v_accvgpr_write_b32 a{i}, 0")
    return "\n".join(s)

class Filler:
    def __init__(self):
        self.n = 0
    def get(self, kind):
        i = self.n; self.n += 1
        if kind == 'v':
            r = 200 + (i % 16)
            return f"v_fma_f32 v{r}, v{r}, v216, v217"
        if kind == 'a':
            r = 200 + (i % 16)
            return f"v_add_f32 v{r}, v{r}, v217"
        if kind == 'e':
            r = 200 + (i % 16)
            return f"v_exp_f32 v{r}, v{220+(i%16)}"
        if kind == 'c':
            r = 200 + (i % 16)
            return f"v_cvt_pk_bf16_f32 v{r}, v{220+(i%16)}, v{221+(i%16)}"
        if kind == 'd':
            r = 128 + 4*(i % 8)
            return f"ds_read_b128 v[{r}:{r+3}], v2 offset:{(i%32)*1024}"
        if kind == 't':
            r = 160 + 2*(i % 16)
            return f"ds_read_b64_tr_b16 v[{r}:{r+1}], v3 offset:{(i%64)*512}"
        if kind == 'n':
            return "s_nop 0"
        if kind == 'w':
            return "s_waitcnt lgkmcnt(8)"
        if kind == 's':
            return f"s_add_u32 s{40+(i%8)}, s{40+(i%8)}, 1"
        if kind == 'm':
            return f"buffer_load_dwordx4 v1, s[8:11], s21 offen offset:{(i%4)*1024} lds"
        if kind == 'g':
            r = 96 + 4*(i % 8)
            return f"buffer_load_dwordx4 v[{r}:{r+3}], v1, s[8:11], s21 offen offset:{(i%4)*1024}"
        if kind == 'r':
            return f"v_accvgpr_read_b32 v{200+(i%16)}, a{200+(i%48)}"
        if kind == 'x':
            r = 220 + 2*(i % 8)
            return f"ds_write_b64 v3, v[{r}:{r+1}] offset:{(i%64)*512}"
        if kind == 'S':
            r = 220 + 4*(i % 4)
            return f"buffer_store_dwordx4 v[{r}:{r+3}], v1, s[8:11], s21 offen offset:{(i%4)*1024} nt"
        if kind == 'u':
            r = 200 + (i % 16)
            return f"v_mul_f32 v{r}, v{r}, v217"
        if kind == 'p':
            r = 200 + 2*(i % 8)
            return f"v_pk_mul_f32 v[{r}:{r+1}], v[{r}:{r+1}], v[216:217]"
        if kind == 'W':
            return "s_waitcnt vmcnt(8)"
        raise ValueError(kind)

def body(shape, pattern, nmfma):
    f = Filler()
    out = []
    for i in range(nmfma):
        if shape == 16:
            acc = 4*(i % 48)
            a = 16 + 4*(i % 8); b = 48 + 4*(i % 12)
            out.append(f"    v_mfma_f32_16x16x32_bf16 a[{acc}:{acc+3}], v[{a}:{a+3}], v[{b}:{b+3}], a[{acc}:{acc+3}]")
        elif shape == 32:
            acc = 16*(i % 16)
            a = 16 + 4*(i % 8); b = 48 + 4*(i % 12)
            out.append(f"    v_mfma_f32_32x32x16_bf16 a[{acc}:{acc+15}], v[{a}:{a+3}], v[{b}:{b+3}], a[{acc}:{acc+15}]")
        p = pattern[i % len(pattern)]
        for k in p:
            out.append("    " + f.get(k))
    return "\n".join(out)

def emit(name, shape, pattern, nmfma=48, nit=200, nvgpr=512):
    with open(f"{name}.s", "w") as fh:
        fh.write(HDR.format(init=init_regs(), nit=nit, body=body(shape, pattern, nmfma), nvgpr=nvgpr))

if __name__ == "__main__":
    tests = sys.argv[1:]
    names = []
    for t in tests:
        shape, pat = t.split(":")
        pattern = pat.split(",")
        name = "mb_" + shape + "_" + pat.replace(",", "-")
        emit(name, int(shape), pattern)
        names.append(name)
    print(" ".join(names))
```

```python
import sys, struct
from mbgen import HDR
def f2u(x): return struct.unpack("<I", struct.pack("<f", x))[0]

def init_regs(accv, civ):
    s = []
    for i in range(16, 256, 4):
        s.append(f"    s_add_u32 s34, s21, {65536 + i*1024}")
        s.append(f"    buffer_load_dwordx4 v[{i}:{i+3}], v1, s[8:11], s34 offen")
    s.append("    s_waitcnt vmcnt(0)")
    for i in range(64):
        s.append(f"    v_accvgpr_write_b32 a{192+i}, v{64+i}")
    for i in range(160, 208):
        s.append(f"    v_lshlrev_b32 v10, 16, v{i}")
        s.append(f"    v_and_b32 v11, 0xffff0000, v{i}")
        s.append(f"    v_add_f32 v10, -2.0, v10")
        s.append(f"    v_add_f32 v11, -2.0, v11")
        s.append(f"    v_exp_f32 v10, v10")
        s.append(f"    v_exp_f32 v11, v11")
        s.append(f"    s_nop 1")
        s.append(f"    v_cvt_pk_bf16_f32 v{i}, v10, v11")
    for i in range(64, 160):
        s.append(f"    v_lshlrev_b32 v10, 16, v{i}")
        s.append(f"    v_and_b32 v11, 0xffff0000, v{i}")
        s.append(f"    v_mul_f32 v10, 0x3db8aa3b, v10")
        s.append(f"    v_mul_f32 v11, 0x3db8aa3b, v11")
        s.append(f"    v_cvt_pk_bf16_f32 v{i}, v10, v11")
    s.append(f"    v_mov_b32 v10, 0x{f2u(accv):08x}")
    for i in range(192):
        s.append(f"    v_accvgpr_write_b32 a{i}, v10")
    for i in range(12, 16):
        s.append(f"    v_mov_b32 v{i}, 0x{f2u(civ):08x}")
    return "\n".join(s)
def v(r): return f"v[{r}:{r+3}]"
def a(r): return f"a[{r}:{r+3}]"
def body(mode):
    out = []
    for i in range(192):
        if mode == "pv":
            grp = i // 6; k = (i % 6) // 2; c = i // 2
            qb = k if grp % 2 == 0 else 2 - k
            u = (i % 2) if c % 2 == 0 else 1 - (i % 2)
            acc = a(4*((qb*16 + grp) % 48))
            V_ = a(192 + 4*((grp*2 + u + (grp // 16)*5) % 16)); P_ = v(160 + 4*((qb*2 + u + (grp // 16)*6) % 12))
            out.append(f"v_mfma_f32_16x16x32_bf16 {acc}, {P_}, {V_}, {acc}")
        else:
            kb = i // 24; r = i % 24
            qb = r // 8; s_ = r % 8; first = s_ == 0
            if (i // 8) % 2 == 1: s_ = 7 - s_
            if kb % 2 == 1: qb = 2 - qb
            acc = v(208 + 4*((kb*3 + qb) % 12))
            out.append(f"v_mfma_f32_16x16x32_bf16 {acc}, {a(192 + 4*((kb*8 + s_) % 16))}, {v(64 + 4*(qb*8 + s_))}, {v(12) if first else acc}")
    return "\n".join("    " + x for x in out)
if __name__ == "__main__":
    names = []
    for nm, mode, accv, civ in [("qk_0", "qk", 0, 0.0), ("qk_m3", "qk", 0, -3.0), ("qk_m48", "qk", 0, -48.0), ("qk_m768", "qk", 0, -768.0),
                                ("pv_0", "pv", 0.0, 0), ("pv_3k", "pv", 3000.0, 0), ("pv_100k", "pv", 100000.0, 0)]:
        with open("b_" + nm + ".s", "w") as fh:
            fh.write(HDR.format(init=init_regs(accv, civ), nit=32, body=body(mode), nvgpr=512).replace("v_add_u32 v12, s3, v0", "v_add_u32 v12, s3, v0"))
        names.append("b_" + nm)
    print(" ".join(names))
```
